```python
import torch

def _softmax(x, axis=-1):
    return torch.softmax(x, dim=axis)
def _gelu(x):
    return torch.nn.functional.gelu(x, approximate="tanh")
def _silu(x):
    return torch.nn.functional.silu(x)
def _sigmoid(x):
    return torch.sigmoid(x)
def _layernorm(x, axis=-1, eps=1e-5):
    m = x.mean(dim=axis, keepdim=True)
    v = x.var(dim=axis, keepdim=True, unbiased=False)
    return (x - m) / torch.sqrt(v + eps)
def _scatter_add(tgt, idx, src, axis=0):
    return tgt.clone().index_add_(axis, idx, src)
def _segment_sum(src, seg, n):
    out = torch.zeros((n,) + src.shape[1:], dtype=src.dtype)
    return out.index_add_(0, seg, src)
def _pad(x, pw):
    flat = tuple(v for pair in reversed(pw) for v in pair)
    return torch.nn.functional.pad(x, flat)

kernel_name = 'standalone__qk_norm__prompt'

def setup_inputs():

    _w = (lambda a: (lambda t: t.to(torch.bfloat16) if t.is_floating_point() else t)(torch.as_tensor(a)))
    B, H, S, D = 1, 16, 4096, 448
    Dh = D // H
    return {
        "q": _w((lambda *s: torch.randn(*s, dtype=torch.bfloat16) * 0.05)(B, H, S, Dh)),
        "k": _w((lambda *s: torch.randn(*s, dtype=torch.bfloat16) * 0.05)(B, H, S, Dh)),
        "v": _w((lambda *s: torch.randn(*s, dtype=torch.bfloat16) * 0.8)(B, H, S, Dh)),
        "t": _w(torch.abs((lambda *s: torch.randn(*s, dtype=torch.bfloat16) * 0.8)(H)) + 1.0),
    }

def reference(q, k, v, t):
    eps = 1e-6
    qn = q / (torch.sqrt((q * q).sum(axis=-1, keepdims=True)) + eps)
    kn = k / (torch.sqrt((k * k).sum(axis=-1, keepdims=True)) + eps)
    logits = torch.einsum('bhqd,bhkd->bhqk', qn, kn) * t[None, :, None, None]
    attn = _softmax(logits, axis=-1)
    return torch.einsum('bhqk,bhkd->bhqd', attn, v)
```

```python
import sys

HEADER = """; Kernarg layout for this problem (56 bytes, ptrs only, base s[0:1]):
"""

TENSOR_BYTES = 16 * 4096 * 56
HEAD_BYTES = 4096 * 56
WS_HEAD = 128 * 4096
LOG2E = 0x3FB8AA3B
EPS = 0x358637BD


class Asm:
    def __init__(self):
        self.lines = []

    def __call__(self, *ls):
        for l in ls:
            self.lines.append("    " + l if not l.endswith(":") and not l.startswith(".") else l)

    def text(self):
        return "\n".join(self.lines) + "\n"


def srd(a, d, base, nbytes):
    a(f"s_mov_b32 s{d}, s{base}", f"s_mov_b32 s{d+1}, s{base+1}",
      f"s_mov_b32 s{d+2}, {nbytes}", f"s_mov_b32 s{d+3}, 0x00020000")


def wg_decode(a, s_head, s_chunk, s_tmp):
    a(f"s_and_b32 s{s_head}, s2, 7", f"s_lshl_b32 s{s_head}, s{s_head}, 1",
      f"s_lshr_b32 s{s_tmp}, s2, 7", f"s_add_u32 s{s_head}, s{s_head}, s{s_tmp}",
      f"s_lshr_b32 s{s_chunk}, s2, 3", f"s_and_b32 s{s_chunk}, s{s_chunk}, 15")


def row_offset(a, v_off, v_lane, v_t):
    a(f"v_and_b32 v{v_off}, 31, v{v_lane}", f"v_mul_u32_u24 v{v_off}, 56, v{v_off}",
      f"v_lshrrev_b32 v{v_t}, 5, v{v_lane}", f"v_mul_u32_u24 v{v_t}, 28, v{v_t}",
      f"v_add_u32 v{v_off}, v{v_off}, v{v_t}")


def normalize(a, R, T, s_scale=None):
    a(f"v_dot2_f32_bf16 v{T}, v{R}, v{R}, 0")
    for i in range(1, 7):
        a(f"v_dot2_f32_bf16 v{T}, v{R+i}, v{R+i}, v{T}")
    a("s_nop 2", f"v_mov_b32 v{T+1}, v{T}", "s_nop 1",
      f"v_permlane32_swap_b32 v{T}, v{T+1}", "s_nop 1",
      f"v_add_f32 v{T}, v{T}, v{T+1}",
      f"v_sqrt_f32 v{T}, v{T}", "s_nop 0",
      f"v_add_f32 v{T}, {hex(EPS)}, v{T}",
      f"v_rcp_f32 v{T}, v{T}", "s_nop 0")
    if s_scale is not None:
        a(f"v_mul_f32 v{T}, s{s_scale}, v{T}")
    for i in range(7):
        p = T + 2 + 2 * (i % 2)
        a(f"v_lshlrev_b32 v{p}, 16, v{R+i}", f"v_and_b32 v{p+1}, 0xffff0000, v{R+i}",
          f"v_mul_f32 v{p}, v{T}, v{p}", f"v_mul_f32 v{p+1}, v{T}, v{p+1}",
          f"v_cvt_pk_bf16_f32 v{R+i}, v{p}, v{p+1}")


def tr_addr(a, v_out, v_lane, t0, t1):
    a(f"v_lshrrev_b32 v{t0}, 5, v{v_lane}", f"v_lshlrev_b32 v{v_out}, 9, v{t0}",
      f"v_bfe_u32 v{t0}, v{v_lane}, 2, 2", f"v_lshl_add_u32 v{v_out}, v{t0}, 6, v{v_out}",
      f"v_and_b32 v{t0}, 1, v{v_lane}", f"v_lshl_add_u32 v{v_out}, v{t0}, 5, v{v_out}",
      f"v_bfe_u32 v{t0}, v{v_lane}, 4, 1", f"v_lshl_add_u32 v{v_out}, v{t0}, 4, v{v_out}",
      f"v_bfe_u32 v{t0}, v{v_lane}, 1, 1", f"v_lshl_add_u32 v{v_out}, v{t0}, 3, v{v_out}")


def kd(name, vgpr, sgpr):
    acc = (vgpr + 3) // 4 * 4
    return f""".amdhsa_kernel {name}
  .amdhsa_next_free_vgpr {vgpr}
  .amdhsa_next_free_sgpr {sgpr}
  .amdhsa_accum_offset {acc}
  .amdhsa_group_segment_fixed_size 0
  .amdhsa_kernarg_size 56
  .amdhsa_user_sgpr_count 2
  .amdhsa_user_sgpr_kernarg_segment_ptr 1
  .amdhsa_system_sgpr_workgroup_id_x 1
.end_amdhsa_kernel
"""


def prep_kernel():
    a = Asm()
    a(".globl prep_kernel", ".p2align 8", ".type prep_kernel,@function", "prep_kernel:")
    a("s_cmp_ge_u32 s2, 256", "s_cbranch_scc1 L_prep_end")
    a("s_load_dwordx4 s[4:7], s[0:1], 8", "s_load_dwordx2 s[8:9], s[0:1], 48")
    wg_decode(a, 20, 21, 22)
    a("v_lshrrev_b32 v1, 6, v0", "v_and_b32 v0, 63, v0", "v_readfirstlane_b32 s23, v1")
    row_offset(a, 2, 0, 3)
    tr_addr(a, 4, 0, 3, 5)
    a("s_lshl_b32 s24, s21, 3", "s_add_u32 s24, s24, s23",
      "s_lshl_b32 s25, s20, 7", "s_add_u32 s25, s25, s24",
      "s_mul_i32 s26, s25, 1792", "s_lshl_b32 s27, s25, 12",
      "s_lshl_b32 s28, s23, 11")
    a("v_and_b32 v5, 31, v0", "v_lshlrev_b32 v5, 6, v5", "v_lshrrev_b32 v3, 5, v0",
      "v_lshl_add_u32 v5, v3, 5, v5", "v_add_u32 v5, s28, v5", "v_add_u32 v4, s28, v4",
      "v_lshlrev_b32 v6, 4, v0")
    a("s_waitcnt lgkmcnt(0)")
    srd(a, 12, 4, TENSOR_BYTES)
    srd(a, 16, 6, TENSOR_BYTES)
    a(f"s_mov_b32 s10, {16 * WS_HEAD}", "s_mov_b32 s11, 0x00020000")
    a("buffer_load_dwordx4 v[16:19], v2, s[16:19], s26 offen",
      "buffer_load_dwordx3 v[20:22], v2, s[16:19], s26 offen offset:16",
      "buffer_load_dwordx4 v[8:11], v2, s[12:15], s26 offen",
      "buffer_load_dwordx3 v[12:14], v2, s[12:15], s26 offen offset:16",
      "v_mov_b32 v15, 0x3f80", "v_mov_b32 v23, 0x3f80",
      "s_waitcnt vmcnt(2)",
      "ds_write_b128 v5, v[16:19]", "ds_write_b128 v5, v[20:23] offset:16",
      "s_waitcnt vmcnt(0) lgkmcnt(0)",
      "ds_read_b64_tr_b16 v[24:25], v4", "ds_read_b64_tr_b16 v[26:27], v4 offset:256",
      "ds_read_b64_tr_b16 v[28:29], v4 offset:1024", "ds_read_b64_tr_b16 v[30:31], v4 offset:1280")
    normalize(a, 8, 32)
    a("buffer_store_dwordx4 v[8:11], v6, s[8:11], s27 offen",
      "buffer_store_dwordx4 v[12:15], v6, s[8:11], s27 offen offset:1024",
      "s_waitcnt lgkmcnt(0)",
      "buffer_store_dwordx4 v[24:27], v6, s[8:11], s27 offen offset:2048",
      "buffer_store_dwordx4 v[28:31], v6, s[8:11], s27 offen offset:3072")
    a("L_prep_end:", "s_endpgm")
    return a.text(), kd("prep_kernel", 40, 32)


VQ = 8
VO = 16
VS = 32
VK = 96
VV = 112
VIDX = 7
VLDS = 6
VDMA = 5
NV = 144


def qk0(t): return f"v_mfma_f32_32x32x16_bf16 v[{VS+16*(t%4)}:{VS+16*(t%4)+15}], v[{VK+8*(t%2)}:{VK+8*(t%2)+3}], v[{VQ}:{VQ+3}], 0"
def qk1(t): return f"v_mfma_f32_32x32x16_bf16 v[{VS+16*(t%4)}:{VS+16*(t%4)+15}], v[{VK+8*(t%2)+4}:{VK+8*(t%2)+7}], v[{VQ+4}:{VQ+7}], v[{VS+16*(t%4)}:{VS+16*(t%4)+15}]"
def pv(t, f): return f"v_smfmac_f32_32x32x32_bf16 v[{VO}:{VO+15}], v[{VV+8*(t%4)+4*f}:{VV+8*(t%4)+4*f+3}], v[{VS+16*(t%4)+8*f}:{VS+16*(t%4)+8*f+7}], v{VIDX}"
def rdk(t, f): return f"ds_read_b128 v[{VK+8*(t%2)+4*f}:{VK+8*(t%2)+4*f+3}], v{VLDS} offset:{(t%16)*4096+1024*f}"
def rdv(t, f): return f"ds_read_b128 v[{VV+8*(t%4)+4*f}:{VV+8*(t%4)+4*f+3}], v{VLDS} offset:{(t%16)*4096+2048+1024*f}"
def ex(t, r): return f"v_exp_f32 v{VS+16*(t%4)+r}, v{VS+16*(t%4)+r}"
def dma(j): return f"buffer_load_dwordx4 v{VDMA}, s[24:27], s34 offen offset:{1024*(j%4)} lds"


def loop_body(a, tag, prio_drop):
    a(".p2align 6", f"L_loop_{tag}:")
    for p in range(16):
        for s in range(4):
            a([qk0(p + 1), qk1(p + 1), pv(p - 1, 0), pv(p - 1, 1)][s])
            if p == 13 and s == 0:
                a("s_waitcnt vmcnt(0) lgkmcnt(0)", "s_barrier", f"v_xor_b32 v{VLDS}, 0x10000, v{VLDS}")
            if s == 3:
                a("s_waitcnt lgkmcnt(3)")
            if prio_drop is not None:
                if p == 13 and s == 1:
                    a("s_setprio 1")
                if p == prio_drop and s == 1:
                    a("s_setprio 0")
            j = None
            if s == 2:
                j = {13: 0, 14: 1, 15: 2, 0: 3, 1: 4, 2: 5, 3: 6, 4: 7}.get(p)
            if p == 13 and s == 1:
                a("s_mov_b32 m0, s33")
            if p == 13 and s == 2:
                a("s_mov_b32 s34, s35")
            if p == 1 and s == 1:
                a("s_add_u32 m0, m0, 4096")
            if p == 1 and s == 2:
                a("s_add_u32 s34, s34, 4096")
            if p == 5 and s == 2:
                a("s_xor_b32 s33, s33, 0x10000", "s_add_u32 s35, s35, 0x10000")
            a([rdk(p + 3, 0), rdk(p + 3, 1), rdv(p + 3, 0), rdv(p + 3, 1)][s])
            if j is not None:
                a(dma(j))
            if p == 15 and s == 3:
                a("s_sub_u32 s36, s36, 1", "s_cmp_lg_u32 s36, 0")
            for r in range(4):
                a(ex(p, 4 * s + r))
    a(f"s_cbranch_scc1 L_loop_{tag}")


def main_kernel(prio_drop):
    a = Asm()
    n = "standalone__qk_norm__prompt_kernel"
    a(f".globl {n}", ".p2align 8", f".type {n},@function", f"{n}:")
    a("s_cmp_ge_u32 s2, 256", "s_cbranch_scc1 L_end")
    a("s_load_dwordx2 s[4:5], s[0:1], 0", "s_load_dwordx4 s[8:11], s[0:1], 24", "s_load_dwordx2 s[12:13], s[0:1], 48")
    wg_decode(a, 28, 29, 30)
    a("v_lshrrev_b32 v1, 6, v0", "v_and_b32 v0, 63, v0", "v_readfirstlane_b32 s31, v1")
    row_offset(a, 2, 0, 3)
    a(f"v_lshlrev_b32 v{VDMA}, 4, v0", f"v_mov_b32 v{VLDS}, v{VDMA}", f"v_mov_b32 v{VIDX}, 0xdddddddd")
    a("s_lshl_b32 s32, s29, 3", "s_add_u32 s32, s32, s31",
      "s_lshl_b32 s30, s28, 7", "s_add_u32 s32, s32, s30", "s_mul_i32 s32, s32, 1792",
      "s_lshl_b32 s33, s31, 13", "s_mov_b32 s34, s33", "s_mov_b32 m0, s33",
      "s_lshl_b32 s30, s28, 19", "s_and_b32 s37, s28, 14", "s_lshl_b32 s37, s37, 1")
    a("s_waitcnt lgkmcnt(0)")
    a("s_load_dword s38, s[8:9], s37")
    srd(a, 16, 4, TENSOR_BYTES)
    srd(a, 20, 10, TENSOR_BYTES)
    a("s_add_u32 s24, s12, s30", "s_addc_u32 s25, s13, 0", f"s_mov_b32 s26, {WS_HEAD}", "s_mov_b32 s27, 0x00020000")
    a(f"buffer_load_dwordx4 v[{VQ}:{VQ+3}], v2, s[16:19], s32 offen",
      f"buffer_load_dwordx3 v[{VQ+4}:{VQ+6}], v2, s[16:19], s32 offen offset:16")
    for st in range(2):
        for j in range(8):
            if j == 4:
                a("s_add_u32 m0, m0, 4096", "s_add_u32 s34, s34, 4096")
            elif j == 0 and st == 1:
                a("s_add_u32 m0, m0, 0xf000", "s_add_u32 s34, s34, 0xf000")
            if st == 1 and j >= 3:
                continue
            a(dma(j))
    a("s_sub_u32 m0, m0, 4096", "s_sub_u32 s34, s34, 4096")
    a("s_add_u32 s35, s33, 0x10000", "s_xor_b32 s33, s33, 0x10000", "s_mov_b32 s36, 8")
    for r in range(16):
        a(f"v_mov_b32 v{VO+r}, 0", f"v_mov_b32 v{VS+48+r}, 0")
    for r in range(8):
        a(f"v_mov_b32 v{VV+24+r}, 0")
    a("s_waitcnt lgkmcnt(0)",
      "s_bitcmp1_b32 s28, 0", "s_cselect_b32 s39, 0, 16", "s_lshl_b32 s38, s38, s39", "s_and_b32 s38, s38, 0xffff0000",
      f"v_mov_b32 v3, {hex(LOG2E)}", "v_mul_f32 v3, s38, v3", "s_nop 0", "v_readfirstlane_b32 s40, v3",
      "v_mul_f32 v4, -0.5, abs(v3)", f"v_cvt_pk_bf16_f32 v{VQ+7}, v4, 0")
    a("s_waitcnt vmcnt(11)")
    normalize(a, VQ, 32, s_scale=40)
    a("s_waitcnt vmcnt(3)", "s_barrier")
    a(rdk(0, 0), rdk(0, 1), rdk(1, 0), rdk(1, 1), rdv(0, 0), rdv(0, 1), rdv(1, 0), rdv(1, 1))
    a("s_waitcnt lgkmcnt(6)", qk0(0), qk1(0), rdk(2, 0), rdk(2, 1), rdv(2, 0), rdv(2, 1), "s_waitcnt lgkmcnt(4)",
      "s_nop 7", "s_nop 3")
    if prio_drop is None:
        loop_body(a, "a", None)
    else:
        a("s_cmp_ge_u32 s31, 4", "s_cbranch_scc1 L_young")
        loop_body(a, "a", None)
        a("s_branch L_tail", "L_young:", "s_setprio 1")
        loop_body(a, "b", prio_drop)
        a("L_tail:")
    a("s_nop 1", pv(127, 0), pv(127, 1), "s_nop 15")
    a(f"v_rcp_f32 v3, v{VO+14}", "s_nop 0")
    for r in range(14):
        a(f"v_mul_f32 v{VO+r}, v3, v{VO+r}")
    for i in range(7):
        a(f"v_cvt_pk_bf16_f32 v{VO+i}, v{VO+2*i}, v{VO+2*i+1}")
    a(f"buffer_store_dwordx4 v[{VO}:{VO+3}], v2, s[20:23], s32 offen",
      f"buffer_store_dwordx3 v[{VO+4}:{VO+6}], v2, s[20:23], s32 offen offset:16")
    a("L_end:", "s_endpgm")
    return a.text(), kd(n, NV, 48)


def build(prio_drop=None):
    p, pk = prep_kernel()
    m, mk = main_kernel(prio_drop)
    s = HEADER
    s += "; @launch kernel=prep_kernel grid=(256,1,1) block=(512,1,1) lds=16384\n"
    s += "; @launch kernel=standalone__qk_norm__prompt_kernel grid=(256,1,1) block=(512,1,1) lds=131072\n"
    s += '.amdgcn_target "amdgcn-amd-amdhsa--gfx950"\n.text\n' + p + m
    s += '.section .rodata,"a"\n.p2align 6\n' + pk + ".p2align 6\n" + mk
    return s


if __name__ == "__main__":
    out = sys.argv[1]
    pd = int(sys.argv[2]) if len(sys.argv) > 2 and sys.argv[2] != "none" else None
    open(out, "w").write(build(pd))
```

```python
import argparse

HEADER = """; Kernarg layout for this problem (56 bytes, ptrs only, base s[0:1]):
; @launch grid=(256,1,1) block=(512,1,1) lds=163840
;
"""

HEAD_BYTES = 4096 * 56
WSK_HEAD = 128 * 2048
LOG2E = 0x3FB8AA3B
EPS = 0x358637BD
T_LIMIT = 0x41A6
KSR = 40960
SPIN_LIMIT = 1 << 16

V_LANE, V_T, V_ROW, V_L16, V_KA, V_OUT, V_T2, V_IDX = 0, 1, 2, 3, 4, 5, 6, 7
V_VA = 8
V_XW = 10
V_XR = 13
V_T3, V_T4 = 14, 15
VQ, VO, VS, VK, VV = 16, 48, 112, 176, 192
NV = 208

S_Q, S_K, S_V, S_O, S_W, S_D = 20, 24, 28, 32, 36, 40
S_HEAD, S_C, S_WV, S_KS, S_QG = 44, 45, 46, 47, 48
S_G, S_GK, S_GV, S_L0, S_DELTA, S_CNT, S_WK, S_WVV = 49, 50, 51, 52, 53, 54, 55, 56
S_TB, S_SC, S_ABORT, S_QOFF = 57, 58, 59, 60
S_M48 = 62
S_T = 64
S_ST = 72


class Asm:
    def __init__(self):
        self.lines = []
        self.n = 0

    def __call__(self, *ls):
        for l in ls:
            self.lines.append(l if l.endswith(":") or l.startswith(".") else "    " + l)

    def label(self, base):
        self.n += 1
        return f"{base}_{self.n}"

    def text(self):
        return "\n".join(self.lines) + "\n"


def vr(b, n):
    return f"v[{b}:{b+n-1}]"


def S(t, o=0, n=16): return vr(VS + 16 * (t % 4) + o, n)
def K(u, f): return vr(VK + 8 * (u % 2) + 4 * f, 4)
def V(u, f): return vr(VV + 8 * (u % 2) + 4 * f, 4)
def Vh(u, f, h): return vr(VV + 8 * (u % 2) + 4 * f + 2 * h, 2)
def Q(b, f): return vr(VQ + 8 * b + 4 * f, 4)
def O(b): return vr(VO + 16 * b, 16)
def qk0(t): return f"v_mfma_f32_32x32x16_bf16 {S(t)}, {K(t//4,0)}, {Q(t%4,0)}, 0"
def qk1(t): return f"v_mfma_f32_32x32x16_bf16 {S(t)}, {K(t//4,1)}, {Q(t%4,1)}, {S(t)}"
def pv(t, f): return f"v_smfmac_f32_32x32x32_bf16 {O(t%4)}, {V(t//4,f)}, {S(t,8*f,8)}, v{V_IDX}"
def rdk(u, f): return f"ds_read_b128 {K(u,f)}, v{V_KA} offset:{(u%4)*4096+1024*f}"
def rdv(u, f, h): return f"ds_read_b64_tr_b16 {Vh(u,f,h)}, v{V_VA+f} offset:{(u%4)*4096+224*h}"
def ex(t, r): return f"v_exp_f32 v{VS+16*(t%4)+r}, v{VS+16*(t%4)+r}"


class Gen:
    def __init__(self, o):
        self.o = o
        self.a = Asm()
        self.nst = 0

    def stamp(self):
        if self.o.stamps:
            j = self.nst
            self.a(f"s_memtime s[{S_ST+4*j}:{S_ST+1+4*j}]", f"s_memrealtime s[{S_ST+2+4*j}:{S_ST+3+4*j}]", "s_waitcnt lgkmcnt(0)")
            self.nst += 1

    def stamp_flush(self):
        if not self.o.stamps:
            return
        a, n = self.a, self.nst
        a("s_add_u32 s4, s16, 0x4000000", "s_addc_u32 s5, s17, 0", "s_mov_b32 s6, 0x100000", "s_mov_b32 s7, 0x00020000",
          f"s_lshl_b32 s8, s2, 3", f"s_add_u32 s8, s8, s{S_WV}", f"s_mul_i32 s8, s8, {8*n}", "v_mov_b32 v1, 0", "s_mov_b64 exec, 1")
        for j in range(n):
            a(f"v_mov_b32 v14, s{S_ST+4*j}", f"v_mov_b32 v15, s{S_ST+2+4*j}",
              f"buffer_store_dwordx2 v[14:15], v1, s[4:7], s8 offen offset:{8*j}", "s_nop 1")

    def srd(self, d, base, s_off, nbytes):
        self.a(f"s_add_u32 s{d}, s{base}, s{s_off}", f"s_addc_u32 s{d+1}, s{base+1}, 0",
               f"s_mov_b32 s{d+2}, {nbytes}", f"s_mov_b32 s{d+3}, 0x00020000")

    def load_rows(self, R, srd, soff):
        self.a(f"buffer_load_dwordx4 {vr(R,4)}, v{V_ROW}, s[{srd}:{srd+3}], s{soff} offen",
               f"buffer_load_dwordx3 {vr(R+4,3)}, v{V_ROW}, s[{srd}:{srd+3}], s{soff} offen offset:16")

    def dma_v(self, soff):
        self.a(f"buffer_load_dwordx4 v{V_L16}, s[{S_V}:{S_V+3}], s{soff} offen lds",
               f"s_mov_b64 exec, s[{S_M48}:{S_M48+1}]",
               f"buffer_load_dwordx4 v{V_L16}, s[{S_V}:{S_V+3}], s{soff} offen offset:1024 lds",
               "s_mov_b64 exec, -1")

    def normalize(self, R, T, s_scale=None):
        a = self.a
        a(f"v_dot2_f32_bf16 v{T}, v{R}, v{R}, 0")
        for i in range(1, 7):
            a(f"v_dot2_f32_bf16 v{T}, v{R+i}, v{R+i}, v{T}")
        a(f"v_lshlrev_b32 v{T+2}, 16, v{R}", f"v_and_b32 v{T+3}, 0xffff0000, v{R}", f"v_lshlrev_b32 v{T+4}, 16, v{R+1}",
          f"v_mov_b32 v{T+1}, v{T}", f"v_and_b32 v{T+5}, 0xffff0000, v{R+1}", "s_nop 0",
          f"v_permlane32_swap_b32 v{T}, v{T+1}", "s_nop 0",
          f"v_add_f32 v{T}, v{T}, v{T+1}",
          f"v_sqrt_f32 v{T}, v{T}", "s_nop 0",
          f"v_add_f32 v{T}, {hex(EPS)}, v{T}",
          f"v_rcp_f32 v{T}, v{T}", "s_nop 0")
        if s_scale is not None:
            a(f"v_mul_f32 v{T}, s{s_scale}, v{T}")
        for i in range(7):
            p = T + 2 + 2 * (i % 2)
            if i >= 2:
                a(f"v_lshlrev_b32 v{p}, 16, v{R+i}", f"v_and_b32 v{p+1}, 0xffff0000, v{R+i}")
            a(f"v_mul_f32 v{p}, v{T}, v{p}", f"v_mul_f32 v{p+1}, v{T}, v{p+1}",
              f"v_cvt_pk_bf16_f32 v{R+i}, v{p}, v{p+1}")

    def tr_addresses(self, s_base):
        a, t, u = self.a, V_T, V_T2
        a(f"v_lshrrev_b32 v{t}, 5, v{V_LANE}", f"v_mul_u32_u24 v{V_VA}, 448, v{t}",
          f"v_bfe_u32 v{t}, v{V_LANE}, 2, 2", f"v_mul_u32_u24 v{t}, 56, v{t}", f"v_add_u32 v{V_VA}, v{V_VA}, v{t}",
          f"v_and_b32 v{t}, 1, v{V_LANE}", f"v_lshl_add_u32 v{V_VA}, v{t}, 5, v{V_VA}",
          f"v_bfe_u32 v{t}, v{V_LANE}, 4, 1", f"v_lshl_add_u32 v{V_VA}, v{t}, 4, v{V_VA}",
          f"v_bfe_u32 v{t}, v{V_LANE}, 1, 1", f"v_lshl_add_u32 v{V_VA}, v{t}, 3, v{V_VA}",
          f"v_add_u32 v{V_VA+1}, 896, v{V_VA}",
          f"v_and_b32 v{t}, 19, v{V_LANE}", f"v_cmp_eq_u32 vcc, 19, v{t}", f"v_mov_b32 v{u}, 1792", "s_nop 0",
          f"v_cndmask_b32 v{V_VA}, v{V_VA}, v{u}, vcc", f"v_cndmask_b32 v{V_VA+1}, v{V_VA+1}, v{u}, vcc",
          f"s_add_u32 s{S_T+7}, s{s_base}, 2048",
          f"v_add_u32 v{V_VA}, s{S_T+7}, v{V_VA}", f"v_add_u32 v{V_VA+1}, s{S_T+7}, v{V_VA+1}")

    def finalize(self, R):
        a = self.a
        a(f"v_mov_b32 v{V_T3}, v{R+12}", f"v_mov_b32 v{V_T4}, v{R+12}", "s_nop 1",
          f"v_permlane32_swap_b32 v{V_T3}, v{V_T4}", "s_nop 0", f"v_rcp_f32 v{V_T4}, v{V_T4}", "s_nop 0")
        for i in range(8):
            a(f"v_mul_f32 v{R+2*i}, v{V_T4}, v{R+2*i}", f"v_mul_f32 v{R+2*i+1}, v{V_T4}, v{R+2*i+1}",
              f"v_cvt_pk_bf16_f32 v{R+i}, v{R+2*i}, v{R+2*i+1}")
            if i == 3:
                a(f"buffer_store_dwordx4 {vr(R,4)}, v{V_OUT}, s[{S_O}:{S_O+3}], s{S_QOFF} offen")
            if i == 5:
                a(f"buffer_store_dwordx2 {vr(R+4,2)}, v{V_OUT}, s[{S_O}:{S_O+3}], s{S_QOFF} offen offset:16")
        a("s_mov_b32 exec_hi, 0",
          f"buffer_store_dwordx2 {vr(R+6,2)}, v{V_OUT}, s[{S_O}:{S_O+3}], s{S_QOFF} offen offset:24",
          "s_mov_b32 exec_hi, -1")

    def prio(self, n):
        l = self.a.label("L_prio")
        self.a(f"s_cbranch_vccnz {l}", f"s_setprio {n}", f"{l}:")

    def stage(self, kind):
        a, o = self.a, self.o
        dma = []
        if kind == "mid":
            for half in range(2):
                for part in range(2):
                    for j in range(2):
                        pre = []
                        if j == 0:
                            pre.append(f"s_add_u32 m0, s{S_L0}, {half*8192 + part*2048}")
                            if half == 1:
                                pre.append(f"s_add_u32 s{S_GK}, s{S_GK}, 16384" if part == 0 else f"s_add_u32 s{S_GV}, s{S_GV}, 14336")
                        if part == 0:
                            ins = [f"buffer_load_dwordx4 v{V_L16}, s[{S_W}:{S_W+3}], s{S_GK} offen offset:{1024*j} sc1 lds"]
                        else:
                            ins = [f"buffer_load_dwordx4 v{V_L16}, s[{S_V}:{S_V+3}], s{S_GV} offen offset:{1024*j} lds"]
                            if j == 1:
                                ins = [f"s_mov_b64 exec, s[{S_M48}:{S_M48+1}]"] + ins + ["s_mov_b64 exec, -1"]
                        dma.append((pre, ins))
        for p in range(16):
            u, jj = p // 4 + 1, p % 4
            nxt = not (kind == "last" and p >= 12)
            for s in range(4):
                m = [qk0(p + 1), qk1(p + 1), pv(p - 1, 0), pv(p - 1, 1)][s]
                if kind == "first" and p == 0 and s >= 2:
                    m = None
                if kind == "last" and p == 15 and s < 2:
                    m = None
                if m:
                    a(m)
                if kind == "first" and p == o.pub_p and s == 2:
                    l = a.label("L_pub")
                    a("s_waitcnt vmcnt(0)", "s_barrier", f"s_cmp_lg_u32 s{S_WV}, 0", f"s_cbranch_scc1 {l}",
                      "s_mov_b64 exec, 1", f"buffer_store_byte v{V_IDX}, v{V_LANE}, s[{S_D}:{S_D+3}], s{S_C} offen sc1",
                      "s_mov_b64 exec, -1", f"{l}:")
                if kind == "first" and p == o.poll_p and s == 2:
                    a(f"buffer_load_dwordx4 {vr(V_XW,4)}, off, s[{S_D}:{S_D+3}], 0 sc1")
                if kind != "last" and p == 12 and s == 2:
                    a("s_waitcnt vmcnt(0) lgkmcnt(0)" if kind == "mid" else "s_waitcnt lgkmcnt(0)", "s_barrier",
                      f"v_add_u32 v{V_KA}, s{S_DELTA}, v{V_KA}")
                if kind != "last" and p == 13 and s == 2:
                    a(f"v_add_u32 v{V_VA}, s{S_DELTA}, v{V_VA}", f"v_add_u32 v{V_VA+1}, s{S_DELTA}, v{V_VA+1}")
                if kind != "last" and p == 13 and s == 3:
                    a(f"s_sub_u32 s{S_DELTA}, 0, s{S_DELTA}")
                if kind != "last" and p == 14 and s == 3:
                    a(f"s_add_u32 s{S_G}, s{S_G}, 1", f"s_and_b32 s{S_G}, s{S_G}, 7")
                if kind != "last" and p == 15 and s == 1:
                    a(f"s_add_u32 s{S_L0}, s{S_L0}, s{S_DELTA}")
                if kind != "last" and p == 15 and s == 2:
                    a(f"s_lshl_b32 s{S_GK}, s{S_G}, 15", f"s_mul_i32 s{S_GV}, s{S_G}, 28672")
                if kind != "last" and p == 15 and s == 3:
                    a(f"s_add_u32 s{S_GK}, s{S_GK}, s{S_WK}", f"s_add_u32 s{S_GV}, s{S_GV}, s{S_WVV}")
                if o.prio and s == 1:
                    if p == o.prio[0] and kind != "last":
                        self.prio(1)
                    if p == o.prio[1]:
                        self.prio(0)
                if jj == 2 and s == 2 and nxt:
                    a("s_waitcnt lgkmcnt(0)")
                if jj == 1 and s == 1:
                    a("s_waitcnt lgkmcnt(1)" if nxt else "s_waitcnt lgkmcnt(0)")
                if nxt:
                    if jj < 2 and s == 3:
                        a(rdk(u, jj))
                    if jj >= 2 and s >= 2:
                        a(rdv(u, jj - 2, s - 2))
                if p < len(dma):
                    if s == 1:
                        a(*dma[p][0])
                    if s == 2:
                        a(*dma[p][1])
                if kind == "mid" and p == 15 and s == 3:
                    a(f"s_sub_u32 s{S_CNT}, s{S_CNT}, 1", f"s_cmp_lg_u32 s{S_CNT}, 0")
                if kind == "last" and p >= 14 and s >= 2:
                    for g in (2 * (s - 2), 2 * (s - 2) + 1):
                        a(f"ds_write_b128 v{V_XW+p-14}, {vr(VO+16*(p-14)+4*g,4)} offset:{1024*g}")
                for r in range(4):
                    a(ex(p, 4 * s + r))

    def prologue(self):
        a, o = self.a, self.o
        T = S_T
        a("s_cmp_ge_u32 s2, 256", "s_cbranch_scc1 L_end")
        self.stamp()
        a("s_load_dwordx8 s[4:11], s[0:1], 0", "s_load_dwordx4 s[12:15], s[0:1], 32", "s_load_dwordx2 s[16:17], s[0:1], 48")
        a(f"v_lshrrev_b32 v{V_T}, 6, v0", "v_and_b32 v0, 63, v0", f"v_readfirstlane_b32 s{S_WV}, v{V_T}",
          f"s_and_b32 s{S_HEAD}, s2, 7", f"s_lshl_b32 s{S_HEAD}, s{S_HEAD}, 1", f"s_lshr_b32 s{T}, s2, 7",
          f"s_add_u32 s{S_HEAD}, s{S_HEAD}, s{T}", f"s_bfe_u32 s{S_C}, s2, 0x40003",
          f"v_and_b32 v{V_T}, 31, v0", f"v_mul_u32_u24 v{V_T}, 56, v{V_T}", f"v_lshrrev_b32 v{V_T2}, 5, v0",
          f"v_mad_u32_u24 v{V_ROW}, v{V_T2}, 28, v{V_T}", f"v_lshl_add_u32 v{V_OUT}, v{V_T2}, 5, v{V_T}",
          f"v_lshlrev_b32 v{V_L16}, 4, v0",
          f"s_and_b32 s{S_KS}, s{S_WV}, 3", f"s_lshr_b32 s{S_QG}, s{S_WV}, 2",
          f"s_mul_i32 s{T}, s{S_HEAD}, {HEAD_BYTES}", f"s_lshl_b32 s{T+1}, s{S_HEAD}, 18", f"s_lshl_b32 s{T+2}, s{S_HEAD}, 4",
          f"s_and_b32 s{T+3}, s{S_HEAD}, 14", f"s_lshl_b32 s{T+3}, s{T+3}, 1",
          f"s_mul_i32 s{S_WVV}, s{S_WV}, 1792", f"s_lshl_b32 s{S_WK}, s{S_WV}, 11",
          f"s_mul_i32 s{S_QOFF}, s{S_C}, 14336", f"s_add_u32 s{S_QOFF}, s{S_QOFF}, s{S_WVV}",
          f"s_mov_b32 s{S_M48}, -1", f"s_mov_b32 s{S_M48+1}, 0xffff")
        a("s_waitcnt lgkmcnt(0)", f"s_load_dword s{S_TB}, s[10:11], s{T+3}")
        self.srd(S_K, 6, T, HEAD_BYTES)
        self.load_rows(VS, S_K, S_QOFF)
        self.srd(S_Q, 4, T, HEAD_BYTES)
        self.load_rows(VS + 32, S_Q, S_QOFF)
        a(f"s_xor_b32 s{T+4}, s{S_C}, 1", f"s_mul_i32 s{T+4}, s{T+4}, 14336", f"s_add_u32 s{T+4}, s{T+4}, s{S_WVV}")
        self.load_rows(VS + 8, S_K, T + 4)
        self.srd(S_V, 8, T, HEAD_BYTES)
        a(f"s_mul_i32 s{S_L0}, s{S_KS}, {KSR}", f"s_add_u32 s{S_GK}, s{S_L0}, 16384",
          f"s_lshl_b32 s{T+5}, s{S_QG}, 12", f"s_add_u32 s{S_L0}, s{S_GK}, s{T+5}",
          f"s_and_b32 s{T+5}, s{S_C}, 1", f"s_lshl_b32 s{T+5}, s{T+5}, 13",
          f"s_add_u32 s{S_GV}, s{S_L0}, s{T+5}",
          f"s_sub_u32 s{S_CNT}, 8192, s{T+5}", f"s_add_u32 s{S_CNT}, s{S_CNT}, s{S_L0}",
          f"s_add_u32 m0, s{S_GV}, 2048",
          f"s_lshr_b32 s{S_G}, s{S_C}, 1", f"s_add_u32 s{S_G}, s{S_G}, 1", f"s_and_b32 s{S_G}, s{S_G}, 7")
        self.dma_v(S_QOFF)
        a(f"s_add_u32 m0, s{S_CNT}, 2048", f"s_mul_i32 s{T+5}, s{S_G}, 28672")
        self.dma_v(T + 4)
        a(f"s_add_u32 s{T+5}, s{T+5}, s{S_WVV}", f"s_add_u32 s{T+6}, s{T+5}, 14336")
        self.load_rows(VS + 16, S_K, T + 5)
        self.load_rows(VS + 24, S_K, T + 6)
        a(f"s_sub_u32 m0, s{S_L0}, {16384 - 2048}", "s_nop 0")
        self.dma_v(T + 5)
        a(f"s_sub_u32 m0, s{S_L0}, {16384 - 8192 - 2048}", "s_nop 0")
        self.dma_v(T + 6)
        self.srd(S_W, 16, T + 1, WSK_HEAD)
        self.srd(S_O, 12, T, HEAD_BYTES)
        self.srd(S_D, 14, T + 2, 16)
        a(f"v_add_u32 v{V_KA}, s{S_GK}, v{V_L16}", f"v_mov_b32 v{V_IDX}, 0xdddddddd")
        self.tr_addresses(S_GK)
        a(f"v_bfe_u32 v{V_T}, v0, 4, 1", f"v_lshlrev_b32 v{V_T}, 13, v{V_T}", f"v_lshrrev_b32 v{V_T2}, 5, v0",
          f"v_lshlrev_b32 v{V_T2}, 14, v{V_T2}", f"v_sub_u32 v{V_T}, v{V_T}, v{V_T2}",
          f"v_and_b32 v{V_T2}, 15, v0", f"v_lshl_add_u32 v{V_T}, v{V_T2}, 4, v{V_T}", f"v_add_u32 v{V_T}, s{S_L0}, v{V_T}",
          f"v_mov_b32 v{VK}, 0x3f80", f"v_mov_b32 v{VK+1}, 0", f"v_mov_b32 v{VK+2}, 0x3f80", f"v_mov_b32 v{VK+3}, 0",
          f"ds_write_b128 v{V_T}, {vr(VK,4)} offset:3840")
        for i in range(4):
            a(f"v_mov_b32 v{VS+8*i+7}, 0x3f80")
        for r in range(64):
            a(f"v_mov_b32 v{VO+r}, 0")
        a("s_waitcnt lgkmcnt(0)",
          f"s_bitcmp1_b32 s{S_HEAD}, 0", f"s_cselect_b32 s{T+3}, 16, 0", f"s_lshr_b32 s{S_TB}, s{S_TB}, s{T+3}",
          f"s_and_b32 s{T+3}, s{S_TB}, 0x7fff", f"s_lshl_b32 s{S_TB}, s{S_TB}, 16",
          f"v_mov_b32 v{V_T}, {hex(LOG2E)}", f"v_mul_f32 v{V_T}, s{S_TB}, v{V_T}",
          f"s_mov_b32 s{S_DELTA}, -16384", f"v_readfirstlane_b32 s{S_SC}, v{V_T}",
          f"v_mul_f32 v{V_T2}, -0.5, abs(v{V_T})", f"v_cvt_pk_bf16_f32 v{VS+39}, v{V_T2}, 0",
          f"s_cmp_gt_u32 s{T+3}, {hex(T_LIMIT)}", "s_cbranch_scc1 L_slow")
        self.stamp()
        TT = VS + 40
        a(f"v_add_u32 v{V_T}, s{S_GV}, v{V_L16}", f"s_lshl_b32 s{T}, s{S_C}, 14", f"s_add_u32 s{T}, s{T}, s{S_WK}",
          "s_waitcnt vmcnt(16)")
        self.stamp()
        self.normalize(VS, TT)
        a(f"buffer_store_dwordx4 {vr(VS,4)}, v{V_L16}, s[{S_W}:{S_W+3}], s{T} offen sc1",
          f"buffer_store_dwordx4 {vr(VS+4,4)}, v{V_L16}, s[{S_W}:{S_W+3}], s{T} offen offset:1024 sc1",
          f"ds_write_b128 v{V_T}, {vr(VS,4)}", f"ds_write_b128 v{V_T}, {vr(VS+4,4)} offset:1024")
        a(f"s_lshl_b32 s{T}, s{S_QG}, 11", f"s_add_u32 s{T}, s{T}, s{S_GK}", f"v_add_u32 v{V_T2}, s{T}, v{V_L16}",
          "s_waitcnt vmcnt(16)")
        self.normalize(VS + 32, TT, S_SC)
        a(f"ds_write_b128 v{V_T2}, {vr(VS+32,4)} offset:16384", f"ds_write_b128 v{V_T2}, {vr(VS+36,4)} offset:17408")
        a(f"v_add_u32 v{V_T}, s{S_CNT}, v{V_L16}", "s_waitcnt vmcnt(14)")
        self.normalize(VS + 8, TT)
        a(f"ds_write_b128 v{V_T}, {vr(VS+8,4)}", f"ds_write_b128 v{V_T}, {vr(VS+12,4)} offset:1024")
        a(f"s_sub_u32 s{S_L0}, s{S_L0}, 16384", f"v_add_u32 v{V_T2}, s{S_L0}, v{V_L16}", "s_waitcnt vmcnt(8)")
        self.normalize(VS + 16, TT)
        a(f"ds_write_b128 v{V_T2}, {vr(VS+16,4)}", f"ds_write_b128 v{V_T2}, {vr(VS+20,4)} offset:1024", "s_waitcnt vmcnt(6)")
        self.normalize(VS + 24, TT)
        a(f"ds_write_b128 v{V_T2}, {vr(VS+24,4)} offset:8192", f"ds_write_b128 v{V_T2}, {vr(VS+28,4)} offset:9216")
        for j in range(4):
            a(f"s_add_u32 s{T+j}, s{S_KS}, {1+j}", f"s_and_b32 s{T+j}, s{T+j}, 3", f"s_mul_i32 s{T+j}, s{T+j}, {KSR}")
        a(f"s_lshl_b32 s{T+4}, s{S_QG}, 11", f"v_add_u32 v{V_T}, s{T+4}, v{V_L16}")
        for j in range(4):
            a(f"v_add_u32 v{V_XW+j}, s{T+j}, v{V_T}")
        a(f"s_mov_b32 s{S_ABORT}, 0", f"s_mov_b32 s{S_CNT}, 6", f"s_cmp_lt_u32 s{S_WV}, 4", "s_cselect_b64 vcc, -1, 0")
        a("s_waitcnt lgkmcnt(0)", "s_barrier")
        self.stamp()
        a(rdk(0, 0), rdk(0, 1))
        for j in range(4):
            a(f"ds_read_b128 {Q(j,0)}, v{V_XW+j} offset:32768", f"ds_read_b128 {Q(j,1)}, v{V_XW+j} offset:33792")
        a(rdv(0, 0, 0), rdv(0, 0, 1), rdv(0, 1, 0), rdv(0, 1, 1))
        if o.prio:
            self.prio(1)
        a("s_waitcnt lgkmcnt(10)", qk0(0), qk1(0), "s_waitcnt lgkmcnt(4)", "s_nop 7", "s_nop 1")

    def poll(self):
        a = self.a
        a(f"s_mov_b32 s{S_T}, 0", "L_poll:", "s_waitcnt vmcnt(0)",
          f"v_and_b32 v{V_XW}, v{V_XW}, v{V_XW+1}", f"v_and_b32 v{V_XW+2}, v{V_XW+2}, v{V_XW+3}",
          f"v_and_b32 v{V_XW}, v{V_XW}, v{V_XW+2}", f"s_add_u32 s{S_T}, s{S_T}, 1",
          f"v_readfirstlane_b32 s{S_T+1}, v{V_XW}",
          f"s_cmp_eq_u32 s{S_T+1}, 0xdddddddd", "s_cbranch_scc1 L_ready",
          f"buffer_load_dwordx4 {vr(V_XW,4)}, off, s[{S_D}:{S_D+3}], 0 sc1",
          f"s_cmp_lt_u32 s{S_T}, {SPIN_LIMIT}", "s_cbranch_scc1 L_poll",
          "s_waitcnt vmcnt(0)", f"s_mov_b32 s{S_ABORT}, 1", "L_ready:")

    def exchange_setup(self):
        a, T = self.a, S_T
        a(f"s_mul_i32 s{T+4}, s{S_QG}, 12288", f"s_add_u32 s{T+4}, s{T+4}, 16384")
        for j in range(4):
            a(f"s_add_u32 s{T}, s{S_KS}, {1+j}", f"s_and_b32 s{T}, s{T}, 3", f"s_mul_i32 s{T}, s{T}, {KSR}",
              f"s_add_u32 s{T}, s{T}, s{T+4}")
            if j < 3:
                a(f"s_add_u32 s{T}, s{T}, {4096*j}")
            a(f"v_add_u32 v{V_XW+j}, s{T}, v{V_L16}")

    def epilogue(self):
        a = self.a
        a("s_nop 0", pv(15, 0), pv(15, 1), "s_nop 3")
        for g in range(4):
            a(f"ds_write_b128 v{V_XW+2}, {vr(VO+32+4*g,4)} offset:{1024*g}")
        a(f"v_mov_b32 v{V_T}, 3844", f"s_cmp_eq_u32 s{S_ABORT}, 0", "s_cbranch_scc1 L_noabort",
          f"ds_write_b32 v{V_T}, v{V_IDX}", "L_noabort:", "s_waitcnt lgkmcnt(0)", "s_barrier")
        a(f"ds_read_b32 v{V_T2}, v{V_T}")
        for j in range(3):
            for g in range(4):
                a(f"ds_read_b128 {vr(VS+16*j+4*g,4)}, v{V_XR} offset:{4096*j+1024*g}")
        a("s_waitcnt lgkmcnt(12)", f"v_readfirstlane_b32 s{S_T}, v{V_T2}", "s_waitcnt lgkmcnt(8)",
          f"s_cmp_lg_u32 s{S_T}, 0", "s_cbranch_scc1 L_slow")
        R = VO + 48
        for j in range(3):
            if j:
                a(f"s_waitcnt lgkmcnt({8-4*j})")
            for r in range(16):
                a(f"v_add_f32 v{R+r}, v{R+r}, v{VS+16*j+r}")
        self.finalize(R)

    def slow(self):
        a, T = self.a, S_T
        KR, TT, M, MN, AL = VS + 16, VS + 40, VS + 48, VS + 49, VS + 50
        a("L_slow:", "s_setprio 0", "s_waitcnt vmcnt(0) lgkmcnt(0)", "s_barrier")
        self.load_rows(VQ, S_Q, S_QOFF)
        a(f"s_mov_b32 s{T}, 0")
        self.tr_addresses(T)
        a(f"s_lshl_b32 s{S_L0}, s{S_WV}, 12", f"v_add_u32 v{V_XW}, s{S_L0}, v{V_L16}",
          f"v_mov_b32 v{VK}, 0x3f80", f"v_mov_b32 v{VK+1}, 0", f"v_mov_b32 v{VK+2}, 0x3f80", f"v_mov_b32 v{VK+3}, 0",
          "s_mov_b64 exec, 0xffff", f"ds_write_b128 v{V_XW}, {vr(VK,4)} offset:3840", "s_mov_b64 exec, -1",
          f"v_mov_b32 v{VQ+7}, 0", f"v_mov_b32 v{KR+7}, 0", f"v_mov_b32 v{M}, 0xff800000")
        for r in range(16):
            a(f"v_mov_b32 v{VO+r}, 0")
        a("s_waitcnt vmcnt(0)")
        self.normalize(VQ, TT, S_SC)
        a(f"s_mov_b32 s{S_GV}, s{S_WVV}", f"s_mov_b32 s{S_CNT}, 16", "L_slow_group:")
        self.load_rows(KR, S_K, S_GV)
        a(f"s_add_u32 m0, s{S_L0}, 2048", "s_nop 0")
        self.dma_v(S_GV)
        a("s_waitcnt vmcnt(0)")
        self.normalize(KR, TT)
        a(f"ds_write_b128 v{V_XW}, {vr(KR,4)}", f"ds_write_b128 v{V_XW}, {vr(KR+4,4)} offset:1024",
          f"v_mov_b32 v{V_KA}, v{V_L16}", f"v_mov_b32 v{V_XW+1}, v{V_VA}", f"v_mov_b32 v{V_XW+2}, v{V_VA+1}",
          f"s_mov_b32 s{S_G}, 8", "s_waitcnt lgkmcnt(0)", "s_barrier", "L_slow_tile:")
        a(f"ds_read_b128 {K(0,0)}, v{V_KA}", f"ds_read_b128 {K(0,1)}, v{V_KA} offset:1024")
        for f in range(2):
            for h in range(2):
                a(f"ds_read_b64_tr_b16 {Vh(0,f,h)}, v{V_XW+1+f} offset:{224*h}")
        a("s_waitcnt lgkmcnt(0)", qk0(0), qk1(0), "s_nop 15")
        a(f"v_max3_f32 v{MN}, v{VS}, v{VS+1}, v{M}")
        for r in range(2, 16, 2):
            a(f"v_max3_f32 v{MN}, v{VS+r}, v{VS+r+1}, v{MN}")
        a(f"v_mov_b32 v{AL}, v{MN}", "s_nop 1", f"v_permlane32_swap_b32 v{MN}, v{AL}", "s_nop 1",
          f"v_max_f32 v{MN}, v{MN}, v{AL}", f"v_sub_f32 v{AL}, v{M}, v{MN}", f"v_exp_f32 v{AL}, v{AL}", f"v_mov_b32 v{M}, v{MN}")
        for r in range(16):
            a(f"v_sub_f32 v{VS+r}, v{VS+r}, v{MN}", f"v_mul_f32 v{VO+r}, v{AL}, v{VO+r}")
        for r in range(16):
            a(ex(0, r))
        a("s_nop 1", pv(0, 0), pv(0, 1),
          f"v_add_u32 v{V_KA}, 4096, v{V_KA}", f"v_add_u32 v{V_XW+1}, 4096, v{V_XW+1}", f"v_add_u32 v{V_XW+2}, 4096, v{V_XW+2}",
          "s_nop 15", f"s_sub_u32 s{S_G}, s{S_G}, 1", f"s_cmp_lg_u32 s{S_G}, 0", "s_cbranch_scc1 L_slow_tile")
        a("s_barrier", f"s_add_u32 s{S_GV}, s{S_GV}, 14336", f"s_sub_u32 s{S_CNT}, s{S_CNT}, 1", f"s_cmp_lg_u32 s{S_CNT}, 0",
          "s_cbranch_scc1 L_slow_group")
        self.finalize(VO)
        a("s_endpgm")

    def build(self):
        a, o = self.a, self.o
        n = "standalone__qk_norm__prompt_kernel"
        a('.amdgcn_target "amdgcn-amd-amdhsa--gfx950"', ".text", f".globl {n}", ".p2align 8", f".type {n},@function", f"{n}:")
        self.prologue()
        self.stage("first")
        self.poll()
        self.stamp()
        a(".p2align 3", "L_loop:")
        self.stage("mid")
        a("s_cbranch_scc1 L_loop")
        self.exchange_setup()
        self.stage("last")
        self.stamp()
        self.epilogue()
        if o.stamps:
            a("s_waitcnt vmcnt(0)")
        self.stamp()
        self.stamp_flush()
        a("L_end:", "s_endpgm")
        self.slow()
        kd = f""".section .rodata,"a"
.p2align 6
.amdhsa_kernel {n}
  .amdhsa_next_free_vgpr {NV}
  .amdhsa_next_free_sgpr {102 if o.stamps else 72}
  .amdhsa_accum_offset {NV}
  .amdhsa_group_segment_fixed_size 0
  .amdhsa_kernarg_size 56
  .amdhsa_user_sgpr_count 2
  .amdhsa_user_sgpr_kernarg_segment_ptr 1
  .amdhsa_system_sgpr_workgroup_id_x 1
.end_amdhsa_kernel
"""
        return HEADER + a.text() + kd


if __name__ == "__main__":
    ap = argparse.ArgumentParser()
    ap.add_argument("out")
    ap.add_argument("--stamps", action="store_true")
    ap.add_argument("--prio", type=lambda s: tuple(map(int, s.split(","))) if s != "none" else None, default=(13, 10))
    ap.add_argument("--pub_p", type=int, default=3)
    ap.add_argument("--poll_p", type=int, default=14)
    o = ap.parse_args()
    open(o.out, "w").write(Gen(o).build())
```

```python
import argparse

HEADER = """; Kernarg layout for this problem (56 bytes, ptrs only, base s[0:1]):
; @launch grid=(256,1,1) block=(512,1,1) lds=163840
;
"""

HEAD_BYTES = 4096 * 56
WSK_HEAD = 128 * 2048
LOG2E = 0x3FB8AA3B
EPS = 0x358637BD
T_LIMIT = 0x41A6
KSR = 40960
SPIN_LIMIT = 1 << 16

V_LANE, V_T, V_ROW, V_L16, V_KA, V_OUT, V_T2, V_IDX = 0, 1, 2, 3, 4, 5, 6, 7
V_VA = 8
V_XW = 10
V_XR = 13
V_T3, V_T4 = 14, 15
VQ, VO, VS, VK, VV = 16, 48, 112, 176, 192
NV = 208

S_Q, S_K, S_V, S_O, S_W, S_D = 20, 24, 28, 32, 36, 40
S_HEAD, S_C, S_WV, S_KS, S_QG = 44, 45, 46, 47, 48
S_G, S_GK, S_GV, S_L0, S_DELTA, S_CNT, S_WK, S_WVV = 49, 50, 51, 52, 53, 54, 55, 56
S_TB, S_SC, S_ABORT, S_QOFF = 57, 58, 59, 60
S_M48 = 62
S_T = 64
S_ST = 72


class Asm:
    def __init__(self):
        self.lines = []
        self.n = 0

    def __call__(self, *ls):
        for l in ls:
            self.lines.append(l if l.endswith(":") or l.startswith(".") else "    " + l)

    def label(self, base):
        self.n += 1
        return f"{base}_{self.n}"

    def text(self):
        return "\n".join(self.lines) + "\n"


def vr(b, n):
    return f"v[{b}:{b+n-1}]"


def S(t, o=0, n=16): return vr(VS + 16 * (t % 4) + o, n)
def K(u, f): return vr(VK + 8 * (u % 2) + 4 * f, 4)
def V(u, f): return vr(VV + 8 * (u % 2) + 4 * f, 4)
def Vh(u, f, h): return vr(VV + 8 * (u % 2) + 4 * f + 2 * h, 2)
def Q(b, f): return vr(VQ + 8 * b + 4 * f, 4)
def O(b): return vr(VO + 16 * b, 16)
def qk0(t): return f"v_mfma_f32_32x32x16_bf16 {S(t)}, {K(t//4,0)}, {Q(t%4,0)}, 0"
def qk1(t): return f"v_mfma_f32_32x32x16_bf16 {S(t)}, {K(t//4,1)}, {Q(t%4,1)}, {S(t)}"
def pv(t, f): return f"v_smfmac_f32_32x32x32_bf16 {O(t%4)}, {V(t//4,f)}, {S(t,8*f,8)}, v{V_IDX}"
def rdk(u, f): return f"ds_read_b128 {K(u,f)}, v{V_KA} offset:{(u%4)*4096+1024*f}"
def rdv(u, f, h): return f"ds_read_b64_tr_b16 {Vh(u,f,h)}, v{V_VA+f} offset:{(u%4)*4096+224*h}"
def ex(t, r): return f"v_exp_f32 v{VS+16*(t%4)+r}, v{VS+16*(t%4)+r}"


class Gen:
    def __init__(self, o):
        self.o = o
        self.a = Asm()
        self.nst = 0

    def stamp(self):
        if self.o.stamps:
            j = self.nst
            self.a(f"s_memtime s[{S_ST+4*j}:{S_ST+1+4*j}]", f"s_memrealtime s[{S_ST+2+4*j}:{S_ST+3+4*j}]", "s_waitcnt lgkmcnt(0)")
            self.nst += 1

    def stamp_flush(self):
        if not self.o.stamps:
            return
        a, n = self.a, self.nst
        if self.o.dbgstamps:
            a("s_cmp_ge_u32 s2, 2", "s_cbranch_scc1 L_end", f"s_cmp_lg_u32 s{S_WV}, 0", "s_cbranch_scc1 L_end",
              "s_mov_b32 s4, s14", "s_mov_b32 s5, s15", "s_mov_b32 s6, 256", "s_mov_b32 s7, 0x00020000",
              "s_lshl_b32 s8, s2, 5", "v_mov_b32 v1, 0", "s_mov_b64 exec, 1")
            for j in range(1, n):
                a(f"s_sub_u32 s9, s{S_ST+2+4*j}, s{S_ST+2}", "v_mov_b32 v14, s9",
                  f"buffer_store_dword v14, v1, s[4:7], s8 offen offset:{4*(j-1)}", "s_nop 1")
            a(f"s_sub_u32 s9, s{S_ST+4*(n-1)}, s{S_ST}", "v_mov_b32 v14, s9",
              f"buffer_store_dword v14, v1, s[4:7], s8 offen offset:{4*(n-1)}", "s_nop 1")
            a(f"v_mov_b32 v14, s{S_T}", f"buffer_store_dword v14, v1, s[4:7], s8 offen offset:28", "s_nop 1")
            return
        a("s_add_u32 s4, s16, 0x4000000", "s_addc_u32 s5, s17, 0", "s_mov_b32 s6, 0x100000", "s_mov_b32 s7, 0x00020000",
          f"s_lshl_b32 s8, s2, 3", f"s_add_u32 s8, s8, s{S_WV}", f"s_mul_i32 s8, s8, {8*n}", "v_mov_b32 v1, 0", "s_mov_b64 exec, 1")
        for j in range(n):
            a(f"v_mov_b32 v14, s{S_ST+4*j}", f"v_mov_b32 v15, s{S_ST+2+4*j}",
              f"buffer_store_dwordx2 v[14:15], v1, s[4:7], s8 offen offset:{8*j}", "s_nop 1")

    def srd(self, d, base, s_off, nbytes):
        self.a(f"s_add_u32 s{d}, s{base}, s{s_off}", f"s_addc_u32 s{d+1}, s{base+1}, 0",
               f"s_mov_b32 s{d+2}, {nbytes}", f"s_mov_b32 s{d+3}, 0x00020000")

    def load_rows(self, R, srd, soff):
        self.a(f"buffer_load_dwordx4 {vr(R,4)}, v{V_ROW}, s[{srd}:{srd+3}], s{soff} offen",
               f"buffer_load_dwordx3 {vr(R+4,3)}, v{V_ROW}, s[{srd}:{srd+3}], s{soff} offen offset:16")

    def dma_v(self, soff):
        self.a(f"buffer_load_dwordx4 v{V_L16}, s[{S_V}:{S_V+3}], s{soff} offen lds",
               f"s_mov_b64 exec, s[{S_M48}:{S_M48+1}]",
               f"buffer_load_dwordx4 v{V_L16}, s[{S_V}:{S_V+3}], s{soff} offen offset:1024 lds",
               "s_mov_b64 exec, -1")

    def normalize(self, R, T, s_scale=None):
        a = self.a
        a(f"v_dot2_f32_bf16 v{T}, v{R}, v{R}, 0")
        for i in range(1, 7):
            a(f"v_dot2_f32_bf16 v{T}, v{R+i}, v{R+i}, v{T}")
        a(f"v_lshlrev_b32 v{T+2}, 16, v{R}", f"v_and_b32 v{T+3}, 0xffff0000, v{R}", f"v_lshlrev_b32 v{T+4}, 16, v{R+1}",
          f"v_mov_b32 v{T+1}, v{T}", f"v_and_b32 v{T+5}, 0xffff0000, v{R+1}", "s_nop 0",
          f"v_permlane32_swap_b32 v{T}, v{T+1}", "s_nop 0",
          f"v_add_f32 v{T}, v{T}, v{T+1}",
          f"v_sqrt_f32 v{T}, v{T}", "s_nop 0",
          f"v_add_f32 v{T}, {hex(EPS)}, v{T}",
          f"v_rcp_f32 v{T}, v{T}", "s_nop 0")
        if s_scale is not None:
            a(f"v_mul_f32 v{T}, s{s_scale}, v{T}")
        for i in range(7):
            p = T + 2 + 2 * (i % 2)
            if i >= 2:
                a(f"v_lshlrev_b32 v{p}, 16, v{R+i}", f"v_and_b32 v{p+1}, 0xffff0000, v{R+i}")
            a(f"v_mul_f32 v{p}, v{T}, v{p}", f"v_mul_f32 v{p+1}, v{T}, v{p+1}",
              f"v_cvt_pk_bf16_f32 v{R+i}, v{p}, v{p+1}")

    def tr_addresses(self, s_base):
        a, t, u = self.a, V_T, V_T2
        a(f"v_lshrrev_b32 v{t}, 5, v{V_LANE}", f"v_mul_u32_u24 v{V_VA}, 448, v{t}",
          f"v_bfe_u32 v{t}, v{V_LANE}, 2, 2", f"v_mul_u32_u24 v{t}, 56, v{t}", f"v_add_u32 v{V_VA}, v{V_VA}, v{t}",
          f"v_and_b32 v{t}, 1, v{V_LANE}", f"v_lshl_add_u32 v{V_VA}, v{t}, 5, v{V_VA}",
          f"v_bfe_u32 v{t}, v{V_LANE}, 4, 1", f"v_lshl_add_u32 v{V_VA}, v{t}, 4, v{V_VA}",
          f"v_bfe_u32 v{t}, v{V_LANE}, 1, 1", f"v_lshl_add_u32 v{V_VA}, v{t}, 3, v{V_VA}",
          f"v_add_u32 v{V_VA+1}, 896, v{V_VA}",
          f"v_and_b32 v{t}, 19, v{V_LANE}", f"v_cmp_eq_u32 vcc, 19, v{t}", f"v_mov_b32 v{u}, 1792", "s_nop 0",
          f"v_cndmask_b32 v{V_VA}, v{V_VA}, v{u}, vcc", f"v_cndmask_b32 v{V_VA+1}, v{V_VA+1}, v{u}, vcc",
          f"s_add_u32 s{S_T+7}, s{s_base}, 2048",
          f"v_add_u32 v{V_VA}, s{S_T+7}, v{V_VA}", f"v_add_u32 v{V_VA+1}, s{S_T+7}, v{V_VA+1}")

    def finalize(self, R):
        a = self.a
        a(f"v_mov_b32 v{V_T3}, v{R+12}", f"v_mov_b32 v{V_T4}, v{R+12}", "s_nop 1",
          f"v_permlane32_swap_b32 v{V_T3}, v{V_T4}", "s_nop 0", f"v_rcp_f32 v{V_T4}, v{V_T4}", "s_nop 0")
        for i in range(8):
            a(f"v_mul_f32 v{R+2*i}, v{V_T4}, v{R+2*i}", f"v_mul_f32 v{R+2*i+1}, v{V_T4}, v{R+2*i+1}",
              f"v_cvt_pk_bf16_f32 v{R+i}, v{R+2*i}, v{R+2*i+1}")
            if i == 3:
                a(f"buffer_store_dwordx4 {vr(R,4)}, v{V_OUT}, s[{S_O}:{S_O+3}], s{S_QOFF} offen")
            if i == 5:
                a(f"buffer_store_dwordx2 {vr(R+4,2)}, v{V_OUT}, s[{S_O}:{S_O+3}], s{S_QOFF} offen offset:16")
        a("s_mov_b32 exec_hi, 0",
          f"buffer_store_dwordx2 {vr(R+6,2)}, v{V_OUT}, s[{S_O}:{S_O+3}], s{S_QOFF} offen offset:24",
          "s_mov_b32 exec_hi, -1")

    def prio(self, n):
        l = self.a.label("L_prio")
        self.a(f"s_cbranch_vccnz {l}", f"s_setprio {n}", f"{l}:")

    def stage(self, kind):
        a, o = self.a, self.o
        dma = []
        if kind == "mid":
            for half in range(2):
                for part in range(2):
                    for j in range(2):
                        pre = []
                        if j == 0:
                            pre.append(f"s_add_u32 m0, s{S_L0}, {half*8192 + part*2048}")
                            if half == 1:
                                pre.append(f"s_add_u32 s{S_GK}, s{S_GK}, 16384" if part == 0 else f"s_add_u32 s{S_GV}, s{S_GV}, 14336")
                        if part == 0:
                            ins = [f"buffer_load_dwordx4 v{V_L16}, s[{S_W}:{S_W+3}], s{S_GK} offen offset:{1024*j} sc1 lds"]
                        else:
                            ins = [f"buffer_load_dwordx4 v{V_L16}, s[{S_V}:{S_V+3}], s{S_GV} offen offset:{1024*j} lds"]
                            if j == 1:
                                ins = [f"s_mov_b64 exec, s[{S_M48}:{S_M48+1}]"] + ins + ["s_mov_b64 exec, -1"]
                        dma.append((pre, ins))
        for p in range(16):
            u, jj = p // 4 + 1, p % 4
            nxt = not (kind == "last" and p >= 12)
            for s in range(4):
                m = [qk0(p + 1), qk1(p + 1), pv(p - 1, 0), pv(p - 1, 1)][s]
                if kind == "first" and p == 0 and s >= 2:
                    m = None
                if kind == "last" and p == 15 and s < 2:
                    m = None
                if m:
                    a(m)
                if kind == "first" and p == o.pub_p and s == 2:
                    l = a.label("L_pub")
                    a("s_waitcnt vmcnt(0)", "s_barrier", f"s_cmp_lg_u32 s{S_WV}, 0", f"s_cbranch_scc1 {l}",
                      "s_mov_b64 exec, 1", f"buffer_store_byte v{V_IDX}, v{V_LANE}, s[{S_D}:{S_D+3}], s{S_C} offen sc1",
                      "s_mov_b64 exec, -1", f"{l}:")
                if kind == "first" and p == o.poll_p and s == 2:
                    a(f"buffer_load_dwordx4 {vr(V_XW,4)}, off, s[{S_D}:{S_D+3}], 0 sc1")
                if kind != "last" and p == 12 and s == 2:
                    a("s_waitcnt vmcnt(0) lgkmcnt(0)" if kind == "mid" else "s_waitcnt lgkmcnt(0)", "s_barrier",
                      f"v_add_u32 v{V_KA}, s{S_DELTA}, v{V_KA}")
                if kind != "last" and p == 13 and s == 2:
                    a(f"v_add_u32 v{V_VA}, s{S_DELTA}, v{V_VA}", f"v_add_u32 v{V_VA+1}, s{S_DELTA}, v{V_VA+1}")
                if kind != "last" and p == 13 and s == 3:
                    a(f"s_sub_u32 s{S_DELTA}, 0, s{S_DELTA}")
                if kind != "last" and p == 14 and s == 3:
                    a(f"s_add_u32 s{S_G}, s{S_G}, 1", f"s_and_b32 s{S_G}, s{S_G}, 7")
                if kind != "last" and p == 15 and s == 1:
                    a(f"s_add_u32 s{S_L0}, s{S_L0}, s{S_DELTA}")
                if kind != "last" and p == 15 and s == 2:
                    a(f"s_lshl_b32 s{S_GK}, s{S_G}, 15", f"s_mul_i32 s{S_GV}, s{S_G}, 28672")
                if kind != "last" and p == 15 and s == 3:
                    a(f"s_add_u32 s{S_GK}, s{S_GK}, s{S_WK}", f"s_add_u32 s{S_GV}, s{S_GV}, s{S_WVV}")
                if o.prio and s == 1:
                    if p == o.prio[0] and kind != "last":
                        self.prio(1)
                    if p == o.prio[1]:
                        self.prio(0)
                if jj == 2 and s == 2 and nxt:
                    a("s_waitcnt lgkmcnt(0)")
                if jj == 1 and s == 1:
                    a("s_waitcnt lgkmcnt(1)" if nxt else "s_waitcnt lgkmcnt(0)")
                if nxt:
                    if jj < 2 and s == 3:
                        a(rdk(u, jj))
                    if jj >= 2 and s >= 2:
                        a(rdv(u, jj - 2, s - 2))
                if p < len(dma):
                    if s == 1:
                        a(*dma[p][0])
                    if s == 2:
                        a(*dma[p][1])
                if kind == "mid" and p == 15 and s == 3:
                    a(f"s_sub_u32 s{S_CNT}, s{S_CNT}, 1", f"s_cmp_lg_u32 s{S_CNT}, 0")
                if kind == "last" and p >= 14 and s >= 2:
                    for g in (2 * (s - 2), 2 * (s - 2) + 1):
                        a(f"ds_write_b128 v{V_XW+p-14}, {vr(VO+16*(p-14)+4*g,4)} offset:{1024*g}")
                for r in range(4):
                    a(ex(p, 4 * s + r))

    def prologue(self):
        a, o = self.a, self.o
        T = S_T
        a("s_cmp_ge_u32 s2, 256", "s_cbranch_scc1 L_end")
        self.stamp()
        a("s_load_dwordx8 s[4:11], s[0:1], 0", "s_load_dwordx4 s[12:15], s[0:1], 32", "s_load_dwordx2 s[16:17], s[0:1], 48")
        a(f"v_lshrrev_b32 v{V_T}, 6, v0", "v_and_b32 v0, 63, v0", f"v_readfirstlane_b32 s{S_WV}, v{V_T}",
          f"s_and_b32 s{S_HEAD}, s2, 7", f"s_lshl_b32 s{S_HEAD}, s{S_HEAD}, 1", f"s_lshr_b32 s{T}, s2, 7",
          f"s_add_u32 s{S_HEAD}, s{S_HEAD}, s{T}", f"s_bfe_u32 s{S_C}, s2, 0x40003",
          f"v_and_b32 v{V_T}, 31, v0", f"v_mul_u32_u24 v{V_T}, 56, v{V_T}", f"v_lshrrev_b32 v{V_T2}, 5, v0",
          f"v_mad_u32_u24 v{V_ROW}, v{V_T2}, 28, v{V_T}", f"v_lshl_add_u32 v{V_OUT}, v{V_T2}, 5, v{V_T}",
          f"v_lshlrev_b32 v{V_L16}, 4, v0",
          f"s_and_b32 s{S_KS}, s{S_WV}, 3", f"s_lshr_b32 s{S_QG}, s{S_WV}, 2",
          f"s_mul_i32 s{T}, s{S_HEAD}, {HEAD_BYTES}", f"s_lshl_b32 s{T+1}, s{S_HEAD}, 18", f"s_lshl_b32 s{T+2}, s{S_HEAD}, 4",
          f"s_and_b32 s{T+3}, s{S_HEAD}, 14", f"s_lshl_b32 s{T+3}, s{T+3}, 1",
          f"s_mul_i32 s{S_WVV}, s{S_WV}, 1792", f"s_lshl_b32 s{S_WK}, s{S_WV}, 11",
          f"s_mul_i32 s{S_QOFF}, s{S_C}, 14336", f"s_add_u32 s{S_QOFF}, s{S_QOFF}, s{S_WVV}",
          f"s_mov_b32 s{S_M48}, -1", f"s_mov_b32 s{S_M48+1}, 0xffff")
        a("s_waitcnt lgkmcnt(0)", f"s_load_dword s{S_TB}, s[10:11], s{T+3}")
        self.srd(S_K, 6, T, HEAD_BYTES)
        self.load_rows(VS, S_K, S_QOFF)
        self.srd(S_Q, 4, T, HEAD_BYTES)
        self.load_rows(VS + 32, S_Q, S_QOFF)
        a(f"s_xor_b32 s{T+4}, s{S_C}, 1", f"s_mul_i32 s{T+4}, s{T+4}, 14336", f"s_add_u32 s{T+4}, s{T+4}, s{S_WVV}")
        self.load_rows(VS + 8, S_K, T + 4)
        self.srd(S_V, 8, T, HEAD_BYTES)
        a(f"s_mul_i32 s{S_L0}, s{S_KS}, {KSR}", f"s_add_u32 s{S_GK}, s{S_L0}, 16384",
          f"s_lshl_b32 s{T+5}, s{S_QG}, 12", f"s_add_u32 s{S_L0}, s{S_GK}, s{T+5}",
          f"s_and_b32 s{T+5}, s{S_C}, 1", f"s_lshl_b32 s{T+5}, s{T+5}, 13",
          f"s_add_u32 s{S_GV}, s{S_L0}, s{T+5}",
          f"s_sub_u32 s{S_CNT}, 8192, s{T+5}", f"s_add_u32 s{S_CNT}, s{S_CNT}, s{S_L0}",
          f"s_add_u32 m0, s{S_GV}, 2048",
          f"s_lshr_b32 s{S_G}, s{S_C}, 1", f"s_add_u32 s{S_G}, s{S_G}, 1", f"s_and_b32 s{S_G}, s{S_G}, 7")
        self.dma_v(S_QOFF)
        a(f"s_add_u32 m0, s{S_CNT}, 2048", f"s_mul_i32 s{T+5}, s{S_G}, 28672")
        self.dma_v(T + 4)
        a(f"s_add_u32 s{T+5}, s{T+5}, s{S_WVV}", f"s_add_u32 s{T+6}, s{T+5}, 14336")
        self.load_rows(VS + 16, S_K, T + 5)
        self.load_rows(VS + 24, S_K, T + 6)
        a(f"s_sub_u32 m0, s{S_L0}, {16384 - 2048}", "s_nop 0")
        self.dma_v(T + 5)
        a(f"s_sub_u32 m0, s{S_L0}, {16384 - 8192 - 2048}", "s_nop 0")
        self.dma_v(T + 6)
        self.srd(S_W, 16, T + 1, WSK_HEAD)
        self.srd(S_O, 12, T, HEAD_BYTES)
        self.srd(S_D, 14, T + 2, 16)
        a(f"v_add_u32 v{V_KA}, s{S_GK}, v{V_L16}", f"v_mov_b32 v{V_IDX}, 0xdddddddd")
        self.tr_addresses(S_GK)
        a(f"v_bfe_u32 v{V_T}, v0, 4, 1", f"v_lshlrev_b32 v{V_T}, 13, v{V_T}", f"v_lshrrev_b32 v{V_T2}, 5, v0",
          f"v_lshlrev_b32 v{V_T2}, 14, v{V_T2}", f"v_sub_u32 v{V_T}, v{V_T}, v{V_T2}",
          f"v_and_b32 v{V_T2}, 15, v0", f"v_lshl_add_u32 v{V_T}, v{V_T2}, 4, v{V_T}", f"v_add_u32 v{V_T}, s{S_L0}, v{V_T}",
          f"v_mov_b32 v{VK}, 0x3f80", f"v_mov_b32 v{VK+1}, 0", f"v_mov_b32 v{VK+2}, 0x3f80", f"v_mov_b32 v{VK+3}, 0",
          f"ds_write_b128 v{V_T}, {vr(VK,4)} offset:3840")
        for i in range(4):
            a(f"v_mov_b32 v{VS+8*i+7}, 0x3f80")
        for r in range(64):
            a(f"v_mov_b32 v{VO+r}, 0")
        a("s_waitcnt lgkmcnt(0)",
          f"s_bitcmp1_b32 s{S_HEAD}, 0", f"s_cselect_b32 s{T+3}, 16, 0", f"s_lshr_b32 s{S_TB}, s{S_TB}, s{T+3}",
          f"s_and_b32 s{T+3}, s{S_TB}, 0x7fff", f"s_lshl_b32 s{S_TB}, s{S_TB}, 16",
          f"v_mov_b32 v{V_T}, {hex(LOG2E)}", f"v_mul_f32 v{V_T}, s{S_TB}, v{V_T}",
          f"s_mov_b32 s{S_DELTA}, -16384", f"v_readfirstlane_b32 s{S_SC}, v{V_T}",
          f"v_mul_f32 v{V_T2}, -0.5, abs(v{V_T})", f"v_cvt_pk_bf16_f32 v{VS+39}, v{V_T2}, 0",
          f"s_cmp_gt_u32 s{T+3}, {hex(T_LIMIT)}", "s_cbranch_scc1 L_slow")
        self.stamp()
        TT = VS + 40
        a(f"v_add_u32 v{V_T}, s{S_GV}, v{V_L16}", f"s_lshl_b32 s{T}, s{S_C}, 14", f"s_add_u32 s{T}, s{T}, s{S_WK}",
          "s_waitcnt vmcnt(16)")
        self.stamp()
        self.normalize(VS, TT)
        a(f"buffer_store_dwordx4 {vr(VS,4)}, v{V_L16}, s[{S_W}:{S_W+3}], s{T} offen sc1",
          f"buffer_store_dwordx4 {vr(VS+4,4)}, v{V_L16}, s[{S_W}:{S_W+3}], s{T} offen offset:1024 sc1",
          f"ds_write_b128 v{V_T}, {vr(VS,4)}", f"ds_write_b128 v{V_T}, {vr(VS+4,4)} offset:1024")
        a(f"s_lshl_b32 s{T}, s{S_QG}, 11", f"s_add_u32 s{T}, s{T}, s{S_GK}", f"v_add_u32 v{V_T2}, s{T}, v{V_L16}",
          "s_waitcnt vmcnt(16)")
        self.normalize(VS + 32, TT, S_SC)
        a(f"ds_write_b128 v{V_T2}, {vr(VS+32,4)} offset:16384", f"ds_write_b128 v{V_T2}, {vr(VS+36,4)} offset:17408")
        a(f"v_add_u32 v{V_T}, s{S_CNT}, v{V_L16}", "s_waitcnt vmcnt(14)")
        self.normalize(VS + 8, TT)
        a(f"ds_write_b128 v{V_T}, {vr(VS+8,4)}", f"ds_write_b128 v{V_T}, {vr(VS+12,4)} offset:1024")
        a(f"s_sub_u32 s{S_L0}, s{S_L0}, 16384", f"v_add_u32 v{V_T2}, s{S_L0}, v{V_L16}", "s_waitcnt vmcnt(8)")
        self.normalize(VS + 16, TT)
        a(f"ds_write_b128 v{V_T2}, {vr(VS+16,4)}", f"ds_write_b128 v{V_T2}, {vr(VS+20,4)} offset:1024", "s_waitcnt vmcnt(6)")
        self.normalize(VS + 24, TT)
        a(f"ds_write_b128 v{V_T2}, {vr(VS+24,4)} offset:8192", f"ds_write_b128 v{V_T2}, {vr(VS+28,4)} offset:9216")
        for j in range(4):
            a(f"s_add_u32 s{T+j}, s{S_KS}, {1+j}", f"s_and_b32 s{T+j}, s{T+j}, 3", f"s_mul_i32 s{T+j}, s{T+j}, {KSR}")
        a(f"s_lshl_b32 s{T+4}, s{S_QG}, 11", f"v_add_u32 v{V_T}, s{T+4}, v{V_L16}")
        for j in range(4):
            a(f"v_add_u32 v{V_XW+j}, s{T+j}, v{V_T}")
        a(f"s_mov_b32 s{S_ABORT}, 0", f"s_mov_b32 s{S_CNT}, 6", f"s_cmp_lt_u32 s{S_WV}, 4", "s_cselect_b64 vcc, -1, 0")
        a("s_waitcnt lgkmcnt(0)", "s_barrier")
        self.stamp()
        a(rdk(0, 0), rdk(0, 1))
        for j in range(4):
            a(f"ds_read_b128 {Q(j,0)}, v{V_XW+j} offset:32768", f"ds_read_b128 {Q(j,1)}, v{V_XW+j} offset:33792")
        a(rdv(0, 0, 0), rdv(0, 0, 1), rdv(0, 1, 0), rdv(0, 1, 1))
        if o.prio:
            self.prio(1)
        a("s_waitcnt lgkmcnt(10)", qk0(0), qk1(0), "s_waitcnt lgkmcnt(4)", "s_nop 7", "s_nop 1")

    def poll(self):
        a = self.a
        a(f"s_mov_b32 s{S_T}, 0", "L_poll:", "s_waitcnt vmcnt(0)",
          f"v_and_b32 v{V_XW}, v{V_XW}, v{V_XW+1}", f"v_and_b32 v{V_XW+2}, v{V_XW+2}, v{V_XW+3}",
          f"v_and_b32 v{V_XW}, v{V_XW}, v{V_XW+2}", f"s_add_u32 s{S_T}, s{S_T}, 1",
          f"v_readfirstlane_b32 s{S_T+1}, v{V_XW}",
          f"s_cmp_eq_u32 s{S_T+1}, 0xdddddddd", "s_cbranch_scc1 L_ready",
          f"buffer_load_dwordx4 {vr(V_XW,4)}, off, s[{S_D}:{S_D+3}], 0 sc1",
          f"s_cmp_lt_u32 s{S_T}, {SPIN_LIMIT}", "s_cbranch_scc1 L_poll",
          "s_waitcnt vmcnt(0)", f"s_mov_b32 s{S_ABORT}, 1", "L_ready:")

    def exchange_setup(self):
        a, T = self.a, S_T
        a(f"s_mul_i32 s{T+4}, s{S_QG}, 12288", f"s_add_u32 s{T+4}, s{T+4}, 16384")
        for j in range(4):
            a(f"s_add_u32 s{T}, s{S_KS}, {1+j}", f"s_and_b32 s{T}, s{T}, 3", f"s_mul_i32 s{T}, s{T}, {KSR}",
              f"s_add_u32 s{T}, s{T}, s{T+4}")
            if j < 3:
                a(f"s_add_u32 s{T}, s{T}, {4096*j}")
            a(f"v_add_u32 v{V_XW+j}, s{T}, v{V_L16}")

    def epilogue(self):
        a = self.a
        a("s_nop 0", pv(15, 0), pv(15, 1), "s_nop 3")
        for g in range(4):
            a(f"ds_write_b128 v{V_XW+2}, {vr(VO+32+4*g,4)} offset:{1024*g}")
        a(f"v_mov_b32 v{V_T}, 3844", f"s_cmp_eq_u32 s{S_ABORT}, 0", "s_cbranch_scc1 L_noabort",
          f"ds_write_b32 v{V_T}, v{V_IDX}", "L_noabort:", "s_waitcnt lgkmcnt(0)", "s_barrier")
        a(f"ds_read_b32 v{V_T2}, v{V_T}")
        for j in range(3):
            for g in range(4):
                a(f"ds_read_b128 {vr(VS+16*j+4*g,4)}, v{V_XR} offset:{4096*j+1024*g}")
        a("s_waitcnt lgkmcnt(12)", f"v_readfirstlane_b32 s{S_T}, v{V_T2}", "s_waitcnt lgkmcnt(8)",
          f"s_cmp_lg_u32 s{S_T}, 0", "s_cbranch_scc1 L_slow")
        R = VO + 48
        for j in range(3):
            if j:
                a(f"s_waitcnt lgkmcnt({8-4*j})")
            for r in range(16):
                a(f"v_add_f32 v{R+r}, v{R+r}, v{VS+16*j+r}")
        self.finalize(R)

    def slow(self):
        a, T = self.a, S_T
        KR, TT, M, MN, AL = VS + 16, VS + 40, VS + 48, VS + 49, VS + 50
        a("L_slow:", "s_setprio 0", "s_waitcnt vmcnt(0) lgkmcnt(0)", "s_barrier")
        self.load_rows(VQ, S_Q, S_QOFF)
        a(f"s_mov_b32 s{T}, 0")
        self.tr_addresses(T)
        a(f"s_lshl_b32 s{S_L0}, s{S_WV}, 12", f"v_add_u32 v{V_XW}, s{S_L0}, v{V_L16}",
          f"v_mov_b32 v{VK}, 0x3f80", f"v_mov_b32 v{VK+1}, 0", f"v_mov_b32 v{VK+2}, 0x3f80", f"v_mov_b32 v{VK+3}, 0",
          "s_mov_b64 exec, 0xffff", f"ds_write_b128 v{V_XW}, {vr(VK,4)} offset:3840", "s_mov_b64 exec, -1",
          f"v_mov_b32 v{VQ+7}, 0", f"v_mov_b32 v{KR+7}, 0", f"v_mov_b32 v{M}, 0xff800000")
        for r in range(16):
            a(f"v_mov_b32 v{VO+r}, 0")
        a("s_waitcnt vmcnt(0)")
        self.normalize(VQ, TT, S_SC)
        a(f"s_mov_b32 s{S_GV}, s{S_WVV}", f"s_mov_b32 s{S_CNT}, 16", "L_slow_group:")
        self.load_rows(KR, S_K, S_GV)
        a(f"s_add_u32 m0, s{S_L0}, 2048", "s_nop 0")
        self.dma_v(S_GV)
        a("s_waitcnt vmcnt(0)")
        self.normalize(KR, TT)
        a(f"ds_write_b128 v{V_XW}, {vr(KR,4)}", f"ds_write_b128 v{V_XW}, {vr(KR+4,4)} offset:1024",
          f"v_mov_b32 v{V_KA}, v{V_L16}", f"v_mov_b32 v{V_XW+1}, v{V_VA}", f"v_mov_b32 v{V_XW+2}, v{V_VA+1}",
          f"s_mov_b32 s{S_G}, 8", "s_waitcnt lgkmcnt(0)", "s_barrier", "L_slow_tile:")
        a(f"ds_read_b128 {K(0,0)}, v{V_KA}", f"ds_read_b128 {K(0,1)}, v{V_KA} offset:1024")
        for f in range(2):
            for h in range(2):
                a(f"ds_read_b64_tr_b16 {Vh(0,f,h)}, v{V_XW+1+f} offset:{224*h}")
        a("s_waitcnt lgkmcnt(0)", qk0(0), qk1(0), "s_nop 15")
        a(f"v_max3_f32 v{MN}, v{VS}, v{VS+1}, v{M}")
        for r in range(2, 16, 2):
            a(f"v_max3_f32 v{MN}, v{VS+r}, v{VS+r+1}, v{MN}")
        a(f"v_mov_b32 v{AL}, v{MN}", "s_nop 1", f"v_permlane32_swap_b32 v{MN}, v{AL}", "s_nop 1",
          f"v_max_f32 v{MN}, v{MN}, v{AL}", f"v_sub_f32 v{AL}, v{M}, v{MN}", f"v_exp_f32 v{AL}, v{AL}", f"v_mov_b32 v{M}, v{MN}")
        for r in range(16):
            a(f"v_sub_f32 v{VS+r}, v{VS+r}, v{MN}", f"v_mul_f32 v{VO+r}, v{AL}, v{VO+r}")
        for r in range(16):
            a(ex(0, r))
        a("s_nop 1", pv(0, 0), pv(0, 1),
          f"v_add_u32 v{V_KA}, 4096, v{V_KA}", f"v_add_u32 v{V_XW+1}, 4096, v{V_XW+1}", f"v_add_u32 v{V_XW+2}, 4096, v{V_XW+2}",
          "s_nop 15", f"s_sub_u32 s{S_G}, s{S_G}, 1", f"s_cmp_lg_u32 s{S_G}, 0", "s_cbranch_scc1 L_slow_tile")
        a("s_barrier", f"s_add_u32 s{S_GV}, s{S_GV}, 14336", f"s_sub_u32 s{S_CNT}, s{S_CNT}, 1", f"s_cmp_lg_u32 s{S_CNT}, 0",
          "s_cbranch_scc1 L_slow_group")
        self.finalize(VO)
        a("s_endpgm")

    def build(self):
        a, o = self.a, self.o
        n = "standalone__qk_norm__prompt_kernel"
        a('.amdgcn_target "amdgcn-amd-amdhsa--gfx950"', ".text", f".globl {n}", ".p2align 8", f".type {n},@function", f"{n}:")
        self.prologue()
        self.stage("first")
        self.poll()
        self.stamp()
        a(".p2align 3", "L_loop:")
        self.stage("mid")
        a("s_cbranch_scc1 L_loop")
        self.exchange_setup()
        self.stage("last")
        self.stamp()
        self.epilogue()
        if o.stamps:
            a("s_waitcnt vmcnt(0)")
        self.stamp()
        self.stamp_flush()
        a("L_end:", "s_endpgm")
        self.slow()
        kd = f""".section .rodata,"a"
.p2align 6
.amdhsa_kernel {n}
  .amdhsa_next_free_vgpr {NV}
  .amdhsa_next_free_sgpr {102 if o.stamps else 72}
  .amdhsa_accum_offset {NV}
  .amdhsa_group_segment_fixed_size 0
  .amdhsa_kernarg_size 56
  .amdhsa_user_sgpr_count 2
  .amdhsa_user_sgpr_kernarg_segment_ptr 1
  .amdhsa_system_sgpr_workgroup_id_x 1
.end_amdhsa_kernel
"""
        return HEADER + a.text() + kd


if __name__ == "__main__":
    ap = argparse.ArgumentParser()
    ap.add_argument("out")
    ap.add_argument("--stamps", action="store_true")
    ap.add_argument("--dbgstamps", action="store_true")
    ap.add_argument("--prio", type=lambda s: tuple(map(int, s.split(","))) if s != "none" else None, default=(13, 10))
    ap.add_argument("--pub_p", type=int, default=3)
    ap.add_argument("--poll_p", type=int, default=14)
    o = ap.parse_args()
    open(o.out, "w").write(Gen(o).build())
```

```python
import argparse

HEADER = """; Kernarg layout for this problem (56 bytes, ptrs only, base s[0:1]):
; @launch grid=(256,1,1) block=(512,1,1) lds=163840
;
"""

HEAD_BYTES = 4096 * 56
WSK_HEAD = 128 * 2048
LOG2E = 0x3FB8AA3B
EPS = 0x358637BD
T_LIMIT = 0x41A6
KSR = 40960
SPIN_LIMIT = 1 << 16

V_LANE, V_T, V_ROW, V_L16, V_KA, V_OUT, V_T2, V_IDX = 0, 1, 2, 3, 4, 5, 6, 7
V_VA = 8
V_XW = 10
V_XR = 13
V_T3, V_T4 = 14, 15
VQ, VO, VS, VK, VV = 16, 48, 112, 176, 192
NV = 208

S_Q, S_K, S_V, S_O, S_W, S_D = 20, 24, 28, 32, 36, 40
S_HEAD, S_C, S_WV, S_KS, S_QG = 44, 45, 46, 47, 48
S_G, S_GK, S_GV, S_L0, S_DELTA, S_CNT, S_WK, S_WVV = 49, 50, 51, 52, 53, 54, 55, 56
S_TB, S_SC, S_ABORT, S_QOFF = 57, 58, 59, 60
S_M48 = 62
S_T = 64
S_ST = 72


class Asm:
    def __init__(self):
        self.lines = []
        self.n = 0

    def __call__(self, *ls):
        for l in ls:
            self.lines.append(l if l.endswith(":") or l.startswith(".") else "    " + l)

    def label(self, base):
        self.n += 1
        return f"{base}_{self.n}"

    def text(self):
        return "\n".join(self.lines) + "\n"


def vr(b, n):
    return f"v[{b}:{b+n-1}]"


def S(t, o=0, n=16): return vr(VS + 16 * (t % 4) + o, n)
def K(u, f): return vr(VK + 8 * (u % 2) + 4 * f, 4)
def V(u, f): return vr(VV + 8 * (u % 2) + 4 * f, 4)
def Vh(u, f, h): return vr(VV + 8 * (u % 2) + 4 * f + 2 * h, 2)
def Q(b, f): return vr(VQ + 8 * b + 4 * f, 4)
def O(b): return vr(VO + 16 * b, 16)
def qk0(t): return f"v_mfma_f32_32x32x16_bf16 {S(t)}, {K(t//4,0)}, {Q(t%4,0)}, 0"
def qk1(t): return f"v_mfma_f32_32x32x16_bf16 {S(t)}, {K(t//4,1)}, {Q(t%4,1)}, {S(t)}"
def pv(t, f): return f"v_smfmac_f32_32x32x32_bf16 {O(t%4)}, {V(t//4,f)}, {S(t,8*f,8)}, v{V_IDX}"
def rdk(u, f): return f"ds_read_b128 {K(u,f)}, v{V_KA} offset:{(u%4)*4096+1024*f}"
def rdv(u, f, h): return f"ds_read_b64_tr_b16 {Vh(u,f,h)}, v{V_VA+f} offset:{(u%4)*4096+224*h}"
def ex(t, r): return f"v_exp_f32 v{VS+16*(t%4)+r}, v{VS+16*(t%4)+r}"


class Gen:
    def __init__(self, o):
        self.o = o
        self.a = Asm()
        self.nst = 0

    def stamp(self):
        if self.o.stamps:
            j = self.nst
            self.a(f"s_memtime s[{S_ST+4*j}:{S_ST+1+4*j}]", f"s_memrealtime s[{S_ST+2+4*j}:{S_ST+3+4*j}]", "s_waitcnt lgkmcnt(0)")
            self.nst += 1

    def stamp_flush(self):
        if not self.o.stamps:
            return
        a, n = self.a, self.nst
        if self.o.probe:
            i, j, k = self.o.probe
            a("s_cmp_lg_u32 s2, 0", "s_cbranch_scc1 L_end", f"s_cmp_lg_u32 s{S_WV}, 0", "s_cbranch_scc1 L_end",
              f"s_sub_u32 s4, s{S_ST+2+4*j}, s{S_ST+2+4*i}", f"s_mul_i32 s4, s4, {k}", "s_min_u32 s4, s4, 20000",
              "L_probe:", "s_memrealtime s[6:7]", "s_waitcnt lgkmcnt(0)", f"s_sub_u32 s6, s6, s{S_ST+2+4*(n-1)}",
              "s_cmp_lt_u32 s6, s4", "s_cbranch_scc1 L_probe")
            return
        if self.o.dbgstamps:
            a("s_cmp_ge_u32 s2, 2", "s_cbranch_scc1 L_end", f"s_cmp_lg_u32 s{S_WV}, 0", "s_cbranch_scc1 L_end",
              "s_mov_b32 s4, s14", "s_mov_b32 s5, s15", "s_mov_b32 s6, 256", "s_mov_b32 s7, 0x00020000",
              "s_lshl_b32 s8, s2, 5", "v_mov_b32 v1, 0", "s_mov_b64 exec, 1")
            for j in range(1, n):
                a(f"s_sub_u32 s9, s{S_ST+2+4*j}, s{S_ST+2}", "v_mov_b32 v14, s9",
                  f"buffer_store_dword v14, v1, s[4:7], s8 offen offset:{4*(j-1)}", "s_nop 1")
            a(f"s_sub_u32 s9, s{S_ST+4*(n-1)}, s{S_ST}", "v_mov_b32 v14, s9",
              f"buffer_store_dword v14, v1, s[4:7], s8 offen offset:{4*(n-1)}", "s_nop 1")
            a(f"v_mov_b32 v14, s{S_T}", f"buffer_store_dword v14, v1, s[4:7], s8 offen offset:28", "s_nop 1")
            return
        a("s_add_u32 s4, s16, 0x4000000", "s_addc_u32 s5, s17, 0", "s_mov_b32 s6, 0x100000", "s_mov_b32 s7, 0x00020000",
          f"s_lshl_b32 s8, s2, 3", f"s_add_u32 s8, s8, s{S_WV}", f"s_mul_i32 s8, s8, {8*n}", "v_mov_b32 v1, 0", "s_mov_b64 exec, 1")
        for j in range(n):
            a(f"v_mov_b32 v14, s{S_ST+4*j}", f"v_mov_b32 v15, s{S_ST+2+4*j}",
              f"buffer_store_dwordx2 v[14:15], v1, s[4:7], s8 offen offset:{8*j}", "s_nop 1")

    def srd(self, d, base, s_off, nbytes):
        self.a(f"s_add_u32 s{d}, s{base}, s{s_off}", f"s_addc_u32 s{d+1}, s{base+1}, 0",
               f"s_mov_b32 s{d+2}, {nbytes}", f"s_mov_b32 s{d+3}, 0x00020000")

    def load_rows(self, R, srd, soff):
        self.a(f"buffer_load_dwordx4 {vr(R,4)}, v{V_ROW}, s[{srd}:{srd+3}], s{soff} offen",
               f"buffer_load_dwordx3 {vr(R+4,3)}, v{V_ROW}, s[{srd}:{srd+3}], s{soff} offen offset:16")

    def dma_v(self, soff):
        self.a(f"buffer_load_dwordx4 v{V_L16}, s[{S_V}:{S_V+3}], s{soff} offen lds",
               f"s_mov_b64 exec, s[{S_M48}:{S_M48+1}]",
               f"buffer_load_dwordx4 v{V_L16}, s[{S_V}:{S_V+3}], s{soff} offen offset:1024 lds",
               "s_mov_b64 exec, -1")

    def normalize(self, R, T, s_scale=None):
        a = self.a
        a(f"v_dot2_f32_bf16 v{T}, v{R}, v{R}, 0")
        for i in range(1, 7):
            a(f"v_dot2_f32_bf16 v{T}, v{R+i}, v{R+i}, v{T}")
        a(f"v_lshlrev_b32 v{T+2}, 16, v{R}", f"v_and_b32 v{T+3}, 0xffff0000, v{R}", f"v_lshlrev_b32 v{T+4}, 16, v{R+1}",
          f"v_mov_b32 v{T+1}, v{T}", f"v_and_b32 v{T+5}, 0xffff0000, v{R+1}", "s_nop 0",
          f"v_permlane32_swap_b32 v{T}, v{T+1}", "s_nop 0",
          f"v_add_f32 v{T}, v{T}, v{T+1}",
          f"v_sqrt_f32 v{T}, v{T}", "s_nop 0",
          f"v_add_f32 v{T}, {hex(EPS)}, v{T}",
          f"v_rcp_f32 v{T}, v{T}", "s_nop 0")
        if s_scale is not None:
            a(f"v_mul_f32 v{T}, s{s_scale}, v{T}")
        for i in range(7):
            p = T + 2 + 2 * (i % 2)
            if i >= 2:
                a(f"v_lshlrev_b32 v{p}, 16, v{R+i}", f"v_and_b32 v{p+1}, 0xffff0000, v{R+i}")
            a(f"v_mul_f32 v{p}, v{T}, v{p}", f"v_mul_f32 v{p+1}, v{T}, v{p+1}",
              f"v_cvt_pk_bf16_f32 v{R+i}, v{p}, v{p+1}")

    def tr_addresses(self, s_base):
        a, t, u = self.a, V_T, V_T2
        a(f"v_lshrrev_b32 v{t}, 5, v{V_LANE}", f"v_mul_u32_u24 v{V_VA}, 448, v{t}",
          f"v_bfe_u32 v{t}, v{V_LANE}, 2, 2", f"v_mul_u32_u24 v{t}, 56, v{t}", f"v_add_u32 v{V_VA}, v{V_VA}, v{t}",
          f"v_and_b32 v{t}, 1, v{V_LANE}", f"v_lshl_add_u32 v{V_VA}, v{t}, 5, v{V_VA}",
          f"v_bfe_u32 v{t}, v{V_LANE}, 4, 1", f"v_lshl_add_u32 v{V_VA}, v{t}, 4, v{V_VA}",
          f"v_bfe_u32 v{t}, v{V_LANE}, 1, 1", f"v_lshl_add_u32 v{V_VA}, v{t}, 3, v{V_VA}",
          f"v_add_u32 v{V_VA+1}, 896, v{V_VA}",
          f"v_and_b32 v{t}, 19, v{V_LANE}", f"v_cmp_eq_u32 vcc, 19, v{t}", f"v_mov_b32 v{u}, 1792", "s_nop 0",
          f"v_cndmask_b32 v{V_VA}, v{V_VA}, v{u}, vcc", f"v_cndmask_b32 v{V_VA+1}, v{V_VA+1}, v{u}, vcc",
          f"s_add_u32 s{S_T+7}, s{s_base}, 2048",
          f"v_add_u32 v{V_VA}, s{S_T+7}, v{V_VA}", f"v_add_u32 v{V_VA+1}, s{S_T+7}, v{V_VA+1}")

    def finalize(self, R):
        a = self.a
        a(f"v_mov_b32 v{V_T3}, v{R+12}", f"v_mov_b32 v{V_T4}, v{R+12}", "s_nop 1",
          f"v_permlane32_swap_b32 v{V_T3}, v{V_T4}", "s_nop 0", f"v_rcp_f32 v{V_T4}, v{V_T4}", "s_nop 0")
        for i in range(8):
            a(f"v_mul_f32 v{R+2*i}, v{V_T4}, v{R+2*i}", f"v_mul_f32 v{R+2*i+1}, v{V_T4}, v{R+2*i+1}",
              f"v_cvt_pk_bf16_f32 v{R+i}, v{R+2*i}, v{R+2*i+1}")
            if i == 3:
                a(f"buffer_store_dwordx4 {vr(R,4)}, v{V_OUT}, s[{S_O}:{S_O+3}], s{S_QOFF} offen")
            if i == 5:
                a(f"buffer_store_dwordx2 {vr(R+4,2)}, v{V_OUT}, s[{S_O}:{S_O+3}], s{S_QOFF} offen offset:16")
        a("s_mov_b32 exec_hi, 0",
          f"buffer_store_dwordx2 {vr(R+6,2)}, v{V_OUT}, s[{S_O}:{S_O+3}], s{S_QOFF} offen offset:24",
          "s_mov_b32 exec_hi, -1")

    def prio(self, n):
        l = self.a.label("L_prio")
        self.a(f"s_cbranch_vccnz {l}", f"s_setprio {n}", f"{l}:")

    def stage(self, kind):
        a, o = self.a, self.o
        dma = []
        if kind == "mid":
            for half in range(2):
                for part in range(2):
                    for j in range(2):
                        pre = []
                        if j == 0:
                            pre.append(f"s_add_u32 m0, s{S_L0}, {half*8192 + part*2048}")
                            if half == 1:
                                pre.append(f"s_add_u32 s{S_GK}, s{S_GK}, 16384" if part == 0 else f"s_add_u32 s{S_GV}, s{S_GV}, 14336")
                        if part == 0:
                            ins = [f"buffer_load_dwordx4 v{V_L16}, s[{S_W}:{S_W+3}], s{S_GK} offen offset:{1024*j} sc1 lds"]
                        else:
                            ins = [f"buffer_load_dwordx4 v{V_L16}, s[{S_V}:{S_V+3}], s{S_GV} offen offset:{1024*j} lds"]
                            if j == 1:
                                ins = [f"s_mov_b64 exec, s[{S_M48}:{S_M48+1}]"] + ins + ["s_mov_b64 exec, -1"]
                        dma.append((pre, ins))
        for p in range(16):
            u, jj = p // 4 + 1, p % 4
            nxt = not (kind == "last" and p >= 12)
            for s in range(4):
                m = [qk0(p + 1), qk1(p + 1), pv(p - 1, 0), pv(p - 1, 1)][s]
                if kind == "first" and p == 0 and s >= 2:
                    m = None
                if kind == "last" and p == 15 and s < 2:
                    m = None
                if m:
                    a(m)
                if kind == "first" and p == o.pub_p and s == 2:
                    l = a.label("L_pub")
                    a("s_waitcnt vmcnt(0)", "s_barrier", f"s_cmp_lg_u32 s{S_WV}, 0", f"s_cbranch_scc1 {l}",
                      "s_mov_b64 exec, 1", f"buffer_store_byte v{V_IDX}, v{V_LANE}, s[{S_D}:{S_D+3}], s{S_C} offen sc1",
                      "s_mov_b64 exec, -1", f"{l}:")
                if kind == "first" and p == o.poll_p and s == 2:
                    a(f"buffer_load_dwordx4 {vr(V_XW,4)}, off, s[{S_D}:{S_D+3}], 0 sc1")
                if kind != "last" and p == 12 and s == 2:
                    a("s_waitcnt vmcnt(0) lgkmcnt(0)" if kind == "mid" else "s_waitcnt lgkmcnt(0)", "s_barrier",
                      f"v_add_u32 v{V_KA}, s{S_DELTA}, v{V_KA}")
                if kind != "last" and p == 13 and s == 2:
                    a(f"v_add_u32 v{V_VA}, s{S_DELTA}, v{V_VA}", f"v_add_u32 v{V_VA+1}, s{S_DELTA}, v{V_VA+1}")
                if kind != "last" and p == 13 and s == 3:
                    a(f"s_sub_u32 s{S_DELTA}, 0, s{S_DELTA}")
                if kind != "last" and p == 14 and s == 3:
                    a(f"s_add_u32 s{S_G}, s{S_G}, 1", f"s_and_b32 s{S_G}, s{S_G}, 7")
                if kind != "last" and p == 15 and s == 1:
                    a(f"s_add_u32 s{S_L0}, s{S_L0}, s{S_DELTA}")
                if kind != "last" and p == 15 and s == 2:
                    a(f"s_lshl_b32 s{S_GK}, s{S_G}, 15", f"s_mul_i32 s{S_GV}, s{S_G}, 28672")
                if kind != "last" and p == 15 and s == 3:
                    a(f"s_add_u32 s{S_GK}, s{S_GK}, s{S_WK}", f"s_add_u32 s{S_GV}, s{S_GV}, s{S_WVV}")
                if o.prio and s == 1:
                    if p == o.prio[0] and kind != "last":
                        self.prio(1)
                    if p == o.prio[1]:
                        self.prio(0)
                if jj == 2 and s == 2 and nxt:
                    a("s_waitcnt lgkmcnt(0)")
                if jj == 1 and s == 1:
                    a("s_waitcnt lgkmcnt(1)" if nxt else "s_waitcnt lgkmcnt(0)")
                if nxt:
                    if jj < 2 and s == 3:
                        a(rdk(u, jj))
                    if jj >= 2 and s >= 2:
                        a(rdv(u, jj - 2, s - 2))
                if p < len(dma):
                    if s == 1:
                        a(*dma[p][0])
                    if s == 2:
                        a(*dma[p][1])
                if kind == "mid" and p == 15 and s == 3:
                    a(f"s_sub_u32 s{S_CNT}, s{S_CNT}, 1", f"s_cmp_lg_u32 s{S_CNT}, 0")
                if kind == "last" and p >= 14 and s >= 2:
                    for g in (2 * (s - 2), 2 * (s - 2) + 1):
                        a(f"ds_write_b128 v{V_XW+p-14}, {vr(VO+16*(p-14)+4*g,4)} offset:{1024*g}")
                for r in range(4):
                    a(ex(p, 4 * s + r))

    def prologue(self):
        a, o = self.a, self.o
        T = S_T
        a("s_cmp_ge_u32 s2, 256", "s_cbranch_scc1 L_end")
        self.stamp()
        a("s_load_dwordx8 s[4:11], s[0:1], 0", "s_load_dwordx4 s[12:15], s[0:1], 32", "s_load_dwordx2 s[16:17], s[0:1], 48")
        a(f"v_lshrrev_b32 v{V_T}, 6, v0", "v_and_b32 v0, 63, v0", f"v_readfirstlane_b32 s{S_WV}, v{V_T}",
          f"s_and_b32 s{S_HEAD}, s2, 7", f"s_lshl_b32 s{S_HEAD}, s{S_HEAD}, 1", f"s_lshr_b32 s{T}, s2, 7",
          f"s_add_u32 s{S_HEAD}, s{S_HEAD}, s{T}", f"s_bfe_u32 s{S_C}, s2, 0x40003",
          f"v_and_b32 v{V_T}, 31, v0", f"v_mul_u32_u24 v{V_T}, 56, v{V_T}", f"v_lshrrev_b32 v{V_T2}, 5, v0",
          f"v_mad_u32_u24 v{V_ROW}, v{V_T2}, 28, v{V_T}", f"v_lshl_add_u32 v{V_OUT}, v{V_T2}, 5, v{V_T}",
          f"v_lshlrev_b32 v{V_L16}, 4, v0",
          f"s_and_b32 s{S_KS}, s{S_WV}, 3", f"s_lshr_b32 s{S_QG}, s{S_WV}, 2",
          f"s_mul_i32 s{T}, s{S_HEAD}, {HEAD_BYTES}", f"s_lshl_b32 s{T+1}, s{S_HEAD}, 18", f"s_lshl_b32 s{T+2}, s{S_HEAD}, 4",
          f"s_and_b32 s{T+3}, s{S_HEAD}, 14", f"s_lshl_b32 s{T+3}, s{T+3}, 1",
          f"s_mul_i32 s{S_WVV}, s{S_WV}, 1792", f"s_lshl_b32 s{S_WK}, s{S_WV}, 11",
          f"s_mul_i32 s{S_QOFF}, s{S_C}, 14336", f"s_add_u32 s{S_QOFF}, s{S_QOFF}, s{S_WVV}",
          f"s_mov_b32 s{S_M48}, -1", f"s_mov_b32 s{S_M48+1}, 0xffff")
        a("s_waitcnt lgkmcnt(0)", f"s_load_dword s{S_TB}, s[10:11], s{T+3}")
        self.srd(S_K, 6, T, HEAD_BYTES)
        self.load_rows(VS, S_K, S_QOFF)
        self.srd(S_Q, 4, T, HEAD_BYTES)
        self.load_rows(VS + 32, S_Q, S_QOFF)
        a(f"s_xor_b32 s{T+4}, s{S_C}, 1", f"s_mul_i32 s{T+4}, s{T+4}, 14336", f"s_add_u32 s{T+4}, s{T+4}, s{S_WVV}")
        self.load_rows(VS + 8, S_K, T + 4)
        self.srd(S_V, 8, T, HEAD_BYTES)
        a(f"s_mul_i32 s{S_L0}, s{S_KS}, {KSR}", f"s_add_u32 s{S_GK}, s{S_L0}, 16384",
          f"s_lshl_b32 s{T+5}, s{S_QG}, 12", f"s_add_u32 s{S_L0}, s{S_GK}, s{T+5}",
          f"s_and_b32 s{T+5}, s{S_C}, 1", f"s_lshl_b32 s{T+5}, s{T+5}, 13",
          f"s_add_u32 s{S_GV}, s{S_L0}, s{T+5}",
          f"s_sub_u32 s{S_CNT}, 8192, s{T+5}", f"s_add_u32 s{S_CNT}, s{S_CNT}, s{S_L0}",
          f"s_add_u32 m0, s{S_GV}, 2048",
          f"s_lshr_b32 s{S_G}, s{S_C}, 1", f"s_add_u32 s{S_G}, s{S_G}, 1", f"s_and_b32 s{S_G}, s{S_G}, 7")
        self.dma_v(S_QOFF)
        a(f"s_add_u32 m0, s{S_CNT}, 2048", f"s_mul_i32 s{T+5}, s{S_G}, 28672")
        self.dma_v(T + 4)
        a(f"s_add_u32 s{T+5}, s{T+5}, s{S_WVV}", f"s_add_u32 s{T+6}, s{T+5}, 14336")
        self.load_rows(VS + 16, S_K, T + 5)
        self.load_rows(VS + 24, S_K, T + 6)
        a(f"s_sub_u32 m0, s{S_L0}, {16384 - 2048}", "s_nop 0")
        self.dma_v(T + 5)
        a(f"s_sub_u32 m0, s{S_L0}, {16384 - 8192 - 2048}", "s_nop 0")
        self.dma_v(T + 6)
        self.srd(S_W, 16, T + 1, WSK_HEAD)
        self.srd(S_O, 12, T, HEAD_BYTES)
        self.srd(S_D, 14, T + 2, 16)
        a(f"v_add_u32 v{V_KA}, s{S_GK}, v{V_L16}", f"v_mov_b32 v{V_IDX}, 0xdddddddd")
        self.tr_addresses(S_GK)
        a(f"v_bfe_u32 v{V_T}, v0, 4, 1", f"v_lshlrev_b32 v{V_T}, 13, v{V_T}", f"v_lshrrev_b32 v{V_T2}, 5, v0",
          f"v_lshlrev_b32 v{V_T2}, 14, v{V_T2}", f"v_sub_u32 v{V_T}, v{V_T}, v{V_T2}",
          f"v_and_b32 v{V_T2}, 15, v0", f"v_lshl_add_u32 v{V_T}, v{V_T2}, 4, v{V_T}", f"v_add_u32 v{V_T}, s{S_L0}, v{V_T}",
          f"v_mov_b32 v{VK}, 0x3f80", f"v_mov_b32 v{VK+1}, 0", f"v_mov_b32 v{VK+2}, 0x3f80", f"v_mov_b32 v{VK+3}, 0",
          f"ds_write_b128 v{V_T}, {vr(VK,4)} offset:3840")
        for i in range(4):
            a(f"v_mov_b32 v{VS+8*i+7}, 0x3f80")
        for r in range(64):
            a(f"v_mov_b32 v{VO+r}, 0")
        a("s_waitcnt lgkmcnt(0)",
          f"s_bitcmp1_b32 s{S_HEAD}, 0", f"s_cselect_b32 s{T+3}, 16, 0", f"s_lshr_b32 s{S_TB}, s{S_TB}, s{T+3}",
          f"s_and_b32 s{T+3}, s{S_TB}, 0x7fff", f"s_lshl_b32 s{S_TB}, s{S_TB}, 16",
          f"v_mov_b32 v{V_T}, {hex(LOG2E)}", f"v_mul_f32 v{V_T}, s{S_TB}, v{V_T}",
          f"s_mov_b32 s{S_DELTA}, -16384", f"v_readfirstlane_b32 s{S_SC}, v{V_T}",
          f"v_mul_f32 v{V_T2}, -0.5, abs(v{V_T})", f"v_cvt_pk_bf16_f32 v{VS+39}, v{V_T2}, 0",
          f"s_cmp_gt_u32 s{T+3}, {hex(T_LIMIT)}", "s_cbranch_scc1 L_slow")
        self.stamp()
        TT = VS + 40
        a(f"v_add_u32 v{V_T}, s{S_GV}, v{V_L16}", f"s_lshl_b32 s{T}, s{S_C}, 14", f"s_add_u32 s{T}, s{T}, s{S_WK}",
          "s_waitcnt vmcnt(16)")
        self.stamp()
        self.normalize(VS, TT)
        a(f"buffer_store_dwordx4 {vr(VS,4)}, v{V_L16}, s[{S_W}:{S_W+3}], s{T} offen sc1",
          f"buffer_store_dwordx4 {vr(VS+4,4)}, v{V_L16}, s[{S_W}:{S_W+3}], s{T} offen offset:1024 sc1",
          f"ds_write_b128 v{V_T}, {vr(VS,4)}", f"ds_write_b128 v{V_T}, {vr(VS+4,4)} offset:1024")
        a(f"s_lshl_b32 s{T}, s{S_QG}, 11", f"s_add_u32 s{T}, s{T}, s{S_GK}", f"v_add_u32 v{V_T2}, s{T}, v{V_L16}",
          "s_waitcnt vmcnt(16)")
        self.normalize(VS + 32, TT, S_SC)
        a(f"ds_write_b128 v{V_T2}, {vr(VS+32,4)} offset:16384", f"ds_write_b128 v{V_T2}, {vr(VS+36,4)} offset:17408")
        a(f"v_add_u32 v{V_T}, s{S_CNT}, v{V_L16}", "s_waitcnt vmcnt(14)")
        self.normalize(VS + 8, TT)
        a(f"ds_write_b128 v{V_T}, {vr(VS+8,4)}", f"ds_write_b128 v{V_T}, {vr(VS+12,4)} offset:1024")
        a(f"s_sub_u32 s{S_L0}, s{S_L0}, 16384", f"v_add_u32 v{V_T2}, s{S_L0}, v{V_L16}", "s_waitcnt vmcnt(8)")
        self.normalize(VS + 16, TT)
        a(f"ds_write_b128 v{V_T2}, {vr(VS+16,4)}", f"ds_write_b128 v{V_T2}, {vr(VS+20,4)} offset:1024", "s_waitcnt vmcnt(6)")
        self.normalize(VS + 24, TT)
        a(f"ds_write_b128 v{V_T2}, {vr(VS+24,4)} offset:8192", f"ds_write_b128 v{V_T2}, {vr(VS+28,4)} offset:9216")
        for j in range(4):
            a(f"s_add_u32 s{T+j}, s{S_KS}, {1+j}", f"s_and_b32 s{T+j}, s{T+j}, 3", f"s_mul_i32 s{T+j}, s{T+j}, {KSR}")
        a(f"s_lshl_b32 s{T+4}, s{S_QG}, 11", f"v_add_u32 v{V_T}, s{T+4}, v{V_L16}")
        for j in range(4):
            a(f"v_add_u32 v{V_XW+j}, s{T+j}, v{V_T}")
        a(f"s_mov_b32 s{S_ABORT}, 0", f"s_mov_b32 s{S_CNT}, 6", f"s_cmp_lt_u32 s{S_WV}, 4", "s_cselect_b64 vcc, -1, 0")
        a("s_waitcnt lgkmcnt(0)", "s_barrier")
        self.stamp()
        a(rdk(0, 0), rdk(0, 1))
        for j in range(4):
            a(f"ds_read_b128 {Q(j,0)}, v{V_XW+j} offset:32768", f"ds_read_b128 {Q(j,1)}, v{V_XW+j} offset:33792")
        a(rdv(0, 0, 0), rdv(0, 0, 1), rdv(0, 1, 0), rdv(0, 1, 1))
        if o.prio:
            self.prio(1)
        a("s_waitcnt lgkmcnt(10)", qk0(0), qk1(0), "s_waitcnt lgkmcnt(4)", "s_nop 7", "s_nop 1")

    def poll(self):
        a = self.a
        a(f"s_mov_b32 s{S_T}, 0", "L_poll:", "s_waitcnt vmcnt(0)",
          f"v_and_b32 v{V_XW}, v{V_XW}, v{V_XW+1}", f"v_and_b32 v{V_XW+2}, v{V_XW+2}, v{V_XW+3}",
          f"v_and_b32 v{V_XW}, v{V_XW}, v{V_XW+2}", f"s_add_u32 s{S_T}, s{S_T}, 1",
          f"v_readfirstlane_b32 s{S_T+1}, v{V_XW}",
          f"s_cmp_eq_u32 s{S_T+1}, 0xdddddddd", "s_cbranch_scc1 L_ready",
          f"buffer_load_dwordx4 {vr(V_XW,4)}, off, s[{S_D}:{S_D+3}], 0 sc1",
          f"s_cmp_lt_u32 s{S_T}, {SPIN_LIMIT}", "s_cbranch_scc1 L_poll",
          "s_waitcnt vmcnt(0)", f"s_mov_b32 s{S_ABORT}, 1", "L_ready:")

    def exchange_setup(self):
        a, T = self.a, S_T
        a(f"s_mul_i32 s{T+4}, s{S_QG}, 12288", f"s_add_u32 s{T+4}, s{T+4}, 16384")
        for j in range(4):
            a(f"s_add_u32 s{T}, s{S_KS}, {1+j}", f"s_and_b32 s{T}, s{T}, 3", f"s_mul_i32 s{T}, s{T}, {KSR}",
              f"s_add_u32 s{T}, s{T}, s{T+4}")
            if j < 3:
                a(f"s_add_u32 s{T}, s{T}, {4096*j}")
            a(f"v_add_u32 v{V_XW+j}, s{T}, v{V_L16}")

    def epilogue(self):
        a = self.a
        a("s_nop 0", pv(15, 0), pv(15, 1), "s_nop 3")
        for g in range(4):
            a(f"ds_write_b128 v{V_XW+2}, {vr(VO+32+4*g,4)} offset:{1024*g}")
        a(f"v_mov_b32 v{V_T}, 3844", f"s_cmp_eq_u32 s{S_ABORT}, 0", "s_cbranch_scc1 L_noabort",
          f"ds_write_b32 v{V_T}, v{V_IDX}", "L_noabort:", "s_waitcnt lgkmcnt(0)", "s_barrier")
        a(f"ds_read_b32 v{V_T2}, v{V_T}")
        for j in range(3):
            for g in range(4):
                a(f"ds_read_b128 {vr(VS+16*j+4*g,4)}, v{V_XR} offset:{4096*j+1024*g}")
        a("s_waitcnt lgkmcnt(12)", f"v_readfirstlane_b32 s{S_T}, v{V_T2}", "s_waitcnt lgkmcnt(8)",
          f"s_cmp_lg_u32 s{S_T}, 0", "s_cbranch_scc1 L_slow")
        R = VO + 48
        for j in range(3):
            if j:
                a(f"s_waitcnt lgkmcnt({8-4*j})")
            for r in range(16):
                a(f"v_add_f32 v{R+r}, v{R+r}, v{VS+16*j+r}")
        self.finalize(R)

    def slow(self):
        a, T = self.a, S_T
        KR, TT, M, MN, AL = VS + 16, VS + 40, VS + 48, VS + 49, VS + 50
        a("L_slow:", "s_setprio 0", "s_waitcnt vmcnt(0) lgkmcnt(0)", "s_barrier")
        self.load_rows(VQ, S_Q, S_QOFF)
        a(f"s_mov_b32 s{T}, 0")
        self.tr_addresses(T)
        a(f"s_lshl_b32 s{S_L0}, s{S_WV}, 12", f"v_add_u32 v{V_XW}, s{S_L0}, v{V_L16}",
          f"v_mov_b32 v{VK}, 0x3f80", f"v_mov_b32 v{VK+1}, 0", f"v_mov_b32 v{VK+2}, 0x3f80", f"v_mov_b32 v{VK+3}, 0",
          "s_mov_b64 exec, 0xffff", f"ds_write_b128 v{V_XW}, {vr(VK,4)} offset:3840", "s_mov_b64 exec, -1",
          f"v_mov_b32 v{VQ+7}, 0", f"v_mov_b32 v{KR+7}, 0", f"v_mov_b32 v{M}, 0xff800000")
        for r in range(16):
            a(f"v_mov_b32 v{VO+r}, 0")
        a("s_waitcnt vmcnt(0)")
        self.normalize(VQ, TT, S_SC)
        a(f"s_mov_b32 s{S_GV}, s{S_WVV}", f"s_mov_b32 s{S_CNT}, 16", "L_slow_group:")
        self.load_rows(KR, S_K, S_GV)
        a(f"s_add_u32 m0, s{S_L0}, 2048", "s_nop 0")
        self.dma_v(S_GV)
        a("s_waitcnt vmcnt(0)")
        self.normalize(KR, TT)
        a(f"ds_write_b128 v{V_XW}, {vr(KR,4)}", f"ds_write_b128 v{V_XW}, {vr(KR+4,4)} offset:1024",
          f"v_mov_b32 v{V_KA}, v{V_L16}", f"v_mov_b32 v{V_XW+1}, v{V_VA}", f"v_mov_b32 v{V_XW+2}, v{V_VA+1}",
          f"s_mov_b32 s{S_G}, 8", "s_waitcnt lgkmcnt(0)", "s_barrier", "L_slow_tile:")
        a(f"ds_read_b128 {K(0,0)}, v{V_KA}", f"ds_read_b128 {K(0,1)}, v{V_KA} offset:1024")
        for f in range(2):
            for h in range(2):
                a(f"ds_read_b64_tr_b16 {Vh(0,f,h)}, v{V_XW+1+f} offset:{224*h}")
        a("s_waitcnt lgkmcnt(0)", qk0(0), qk1(0), "s_nop 15")
        a(f"v_max3_f32 v{MN}, v{VS}, v{VS+1}, v{M}")
        for r in range(2, 16, 2):
            a(f"v_max3_f32 v{MN}, v{VS+r}, v{VS+r+1}, v{MN}")
        a(f"v_mov_b32 v{AL}, v{MN}", "s_nop 1", f"v_permlane32_swap_b32 v{MN}, v{AL}", "s_nop 1",
          f"v_max_f32 v{MN}, v{MN}, v{AL}", f"v_sub_f32 v{AL}, v{M}, v{MN}", f"v_exp_f32 v{AL}, v{AL}", f"v_mov_b32 v{M}, v{MN}")
        for r in range(16):
            a(f"v_sub_f32 v{VS+r}, v{VS+r}, v{MN}", f"v_mul_f32 v{VO+r}, v{AL}, v{VO+r}")
        for r in range(16):
            a(ex(0, r))
        a("s_nop 1", pv(0, 0), pv(0, 1),
          f"v_add_u32 v{V_KA}, 4096, v{V_KA}", f"v_add_u32 v{V_XW+1}, 4096, v{V_XW+1}", f"v_add_u32 v{V_XW+2}, 4096, v{V_XW+2}",
          "s_nop 15", f"s_sub_u32 s{S_G}, s{S_G}, 1", f"s_cmp_lg_u32 s{S_G}, 0", "s_cbranch_scc1 L_slow_tile")
        a("s_barrier", f"s_add_u32 s{S_GV}, s{S_GV}, 14336", f"s_sub_u32 s{S_CNT}, s{S_CNT}, 1", f"s_cmp_lg_u32 s{S_CNT}, 0",
          "s_cbranch_scc1 L_slow_group")
        self.finalize(VO)
        a("s_endpgm")

    def build(self):
        a, o = self.a, self.o
        n = "standalone__qk_norm__prompt_kernel"
        a('.amdgcn_target "amdgcn-amd-amdhsa--gfx950"', ".text", f".globl {n}", ".p2align 8", f".type {n},@function", f"{n}:")
        self.prologue()
        self.stage("first")
        self.poll()
        self.stamp()
        a(".p2align 3", "L_loop:")
        self.stage("mid")
        a("s_cbranch_scc1 L_loop")
        self.exchange_setup()
        self.stage("last")
        self.stamp()
        self.epilogue()
        if o.stamps:
            a("s_waitcnt vmcnt(0)")
        self.stamp()
        self.stamp_flush()
        a("L_end:", "s_endpgm")
        self.slow()
        kd = f""".section .rodata,"a"
.p2align 6
.amdhsa_kernel {n}
  .amdhsa_next_free_vgpr {NV}
  .amdhsa_next_free_sgpr {102 if o.stamps else 72}
  .amdhsa_accum_offset {NV}
  .amdhsa_group_segment_fixed_size 0
  .amdhsa_kernarg_size 56
  .amdhsa_user_sgpr_count 2
  .amdhsa_user_sgpr_kernarg_segment_ptr 1
  .amdhsa_system_sgpr_workgroup_id_x 1
.end_amdhsa_kernel
"""
        return HEADER + a.text() + kd


if __name__ == "__main__":
    ap = argparse.ArgumentParser()
    ap.add_argument("out")
    ap.add_argument("--stamps", action="store_true")
    ap.add_argument("--dbgstamps", action="store_true")
    ap.add_argument("--probe", type=lambda s: tuple(map(int, s.split(","))), default=None)
    ap.add_argument("--prio", type=lambda s: tuple(map(int, s.split(","))) if s != "none" else None, default=(13, 10))
    ap.add_argument("--pub_p", type=int, default=3)
    ap.add_argument("--poll_p", type=int, default=14)
    o = ap.parse_args()
    open(o.out, "w").write(Gen(o).build())
```

```python
import argparse

HEADER = """; Kernarg layout for this problem (56 bytes, ptrs only, base s[0:1]):
; @launch grid=(256,1,1) block=(512,1,1) lds=163840
;
"""

HEAD_BYTES = 4096 * 56
WSK_HEAD = 128 * 2048
LOG2E = 0x3FB8AA3B
EPS = 0x358637BD
T_LIMIT = 0x41A6
BUF0, QAREA = 0x10000, 0x20000
ABORT_WORD = 3852
SPIN_LIMIT = 1 << 16

V_LANE, V_T, V_ROW, V_L16, V_KA, V_OUT, V_T2, V_IDX = 0, 1, 2, 3, 4, 5, 6, 7
V_VA = 8
V_XW = 10
V_T3, V_T4 = 14, 15
VQ, VO, VS, VK, VV = 16, 48, 112, 176, 192
VR, VRT = 208, 232
V_FW = 240
V_FW1 = 241
V_KB = 242
NV = 245

S_Q, S_K, S_V, S_O, S_W, S_D = 20, 24, 28, 32, 36, 40
S_HEAD, S_C, S_WV, S_KS, S_QG = 44, 45, 46, 47, 48
S_G, S_GK, S_GV, S_L0, S_N0, S_CNT, S_WK, S_WVV = 49, 50, 51, 52, 53, 54, 55, 56
S_TB, S_SC, S_ABORT, S_QOFF, S_N1 = 57, 58, 59, 60, 61
S_CM, S_CH = 18, 19
S_M48 = 62
S_T = 64
S_ST = 72


class Asm:
    def __init__(self):
        self.lines = []
        self.n = 0

    def __call__(self, *ls):
        for l in ls:
            self.lines.append(l if l.endswith(":") or l.startswith(".") else "    " + l)

    def label(self, base):
        self.n += 1
        return f"{base}_{self.n}"

    def text(self):
        return "\n".join(self.lines) + "\n"


def vr(b, n): return f"v[{b}:{b+n-1}]"
def sr(b): return f"s[{b}:{b+3}]"
def S(t, o=0, n=16): return vr(VS + 16 * (t % 4) + o, n)
def K(u, f): return vr(VK + 8 * (u % 2) + 4 * f, 4)
def V(u, f): return vr(VV + 8 * (u % 2) + 4 * f, 4)
def Vh(u, f, h): return vr(VV + 8 * (u % 2) + 4 * f + 2 * h, 2)
def Q(b, f): return vr(VQ + 8 * b + 4 * f, 4)
def O(b): return vr(VO + 16 * b, 16)
def qk(t, f, u, b): return f"v_mfma_f32_32x32x16_bf16 {S(t)}, {K(u,f)}, {Q(b,f)}, {S(t) if f else 0}"
def pv(t, f, u, b): return f"v_smfmac_f32_32x32x32_bf16 {O(b)}, {V(u,f)}, {S(t,8*f,8)}, v{V_IDX}"
def rdk(u, f): return f"ds_read_b128 {K(u,f)}, v{V_KA} offset:{(u%4)*16384+1024*f}"
def rdv(u, f, h): return f"ds_read_b64_tr_b16 {Vh(u,f,h)}, v{V_VA+f} offset:{(u%4)*16384+224*h}"
def rdk_abs(u, f, n): return f"ds_read_b128 {K(u,f)}, v{V_KB} offset:{n*4096+1024*f}"
def rdv_abs(u, f, h, n): return f"ds_read_b64_tr_b16 {Vh(u,f,h)}, v{V_KB+1+f} offset:{n*4096+224*h}"


def resolve(stream, pending):
    out, q = [], list(pending)
    for x in stream:
        if isinstance(x, tuple) and x[0] == "need":
            idx = [i for i, t in enumerate(q) if t in x[1]]
            if idx:
                q = q[max(idx) + 1:]
                assert len(q) <= 15
                out.append(f"s_waitcnt lgkmcnt({len(q)})")
            continue
        text, tag = (x[1], x[2]) if isinstance(x, tuple) else (x, None)
        if text.startswith("ds_"):
            q.append(tag)
        elif "lgkmcnt(" in text:
            n = int(text.split("lgkmcnt(")[1].split(")")[0])
            q = q[len(q) - n:] if n and len(q) > n else ([] if n == 0 else q)
        out.append(text)
    return out, q
def ex(t, r): return f"v_exp_f32 v{VS+16*(t%4)+r}, v{VS+16*(t%4)+r}"
def ld4(R, srd, so): return f"buffer_load_dwordx4 {vr(R,4)}, v{V_ROW}, {sr(srd)}, s{so} offen"
def ld3(R, srd, so): return f"buffer_load_dwordx3 {vr(R+4,3)}, v{V_ROW}, {sr(srd)}, s{so} offen offset:16"
def dk(so, j): return [f"buffer_load_dwordx4 v{V_L16}, {sr(S_W)}, s{so} offen offset:{1024*j} sc1 lds"]
def dv(so, j):
    ins = f"buffer_load_dwordx4 v{V_L16}, {sr(S_V)}, s{so} offen offset:{1024*j} lds"
    return [f"s_mov_b64 exec, s[{S_M48}:{S_M48+1}]", ins, "s_mov_b64 exec, -1"] if j else [ins]
def wfrag(addr, R, off): return [f"ds_write_b128 v{addr}, {vr(R,4)} offset:{off}", f"ds_write_b128 v{addr}, {vr(R+4,4)} offset:{off+1024}"]
FLAGLOAD = f"buffer_load_dwordx4 {vr(V_XW,4)}, off, {sr(S_D)}, 0 sc1"


def norm_chunks(R, T, s_scale=None):
    un = lambda i, p: [f"v_lshlrev_b32 v{p}, 16, v{R+i}", f"v_and_b32 v{p+1}, 0xffff0000, v{R+i}"]
    c = [[f"v_dot2_f32_bf16 v{T}, v{R}, v{R}, 0", f"v_dot2_f32_bf16 v{T+1}, v{R+1}, v{R+1}, 0"]
         + [f"v_dot2_f32_bf16 v{T+i%2}, v{R+i}, v{R+i}, v{T+i%2}" for i in range(2, 7)]]
    c.append([f"v_add_f32 v{T}, v{T}, v{T+1}"] + un(0, T + 2)
             + [f"v_add_f32_dpp v{T}, v{T}, v{T} quad_perm:[1,0,3,2] row_mask:0xf bank_mask:0xf",
                f"v_sqrt_f32 v{T}, v{T}", un(1, T + 4)[0], f"v_add_f32 v{T}, {hex(EPS)}, v{T}",
                f"v_rcp_f32 v{T}, v{T}", un(1, T + 4)[1]])
    x = [f"v_mul_f32 v{T}, s{s_scale}, v{T}"] if s_scale is not None else []
    for i in range(7):
        p = T + 2 + 2 * (i % 3)
        if i + 2 < 7:
            x += un(i + 2, T + 2 + 2 * ((i + 2) % 3))
        x += [f"v_pk_mul_f32 {vr(p,2)}, {vr(p,2)}, {vr(T,2)} op_sel_hi:[1,0]", f"v_cvt_pk_bf16_f32 v{R+i}, v{p}, v{p+1}"]
        if i in (1, 3, 6):
            c.append(x)
            x = []
    return c


class Gen:
    def __init__(self, o):
        self.o = o
        self.a = Asm()
        self.nst = 0

    def stamp(self, fine=False):
        if self.o.stamps and (self.o.fine or not fine):
            j = self.nst
            self.a("s_memtime s[100:101]", "s_memrealtime s[98:99]", "s_waitcnt lgkmcnt(0)",
                   f"s_mov_b32 s{S_ST+2*j}, s100", f"s_mov_b32 s{S_ST+2*j+1}, s98")
            self.nst += 1

    def stamp_flush(self):
        if not self.o.stamps:
            return
        a, n = self.a, self.nst
        a("s_add_u32 s4, s16, 0x4000000", "s_addc_u32 s5, s17, 0", "s_mov_b32 s6, 0x100000", "s_mov_b32 s7, 0x00020000",
          "s_lshl_b32 s8, s2, 3", f"s_add_u32 s8, s8, s{S_WV}", f"s_mul_i32 s8, s8, {8*n}", "v_mov_b32 v1, 0", "s_mov_b64 exec, 1")
        for j in range(n):
            a(f"v_mov_b32 v14, s{S_ST+2*j}", f"v_mov_b32 v15, s{S_ST+2*j+1}",
              f"buffer_store_dwordx2 v[14:15], v1, s[4:7], s8 offen offset:{8*j}", "s_nop 1")

    def srd(self, d, base, s_off, nbytes):
        self.a(f"s_add_u32 s{d}, s{base}, s{s_off}", f"s_addc_u32 s{d+1}, s{base+1}, 0",
               f"s_mov_b32 s{d+2}, {nbytes}", f"s_mov_b32 s{d+3}, 0x00020000")

    def normalize(self, *job):
        for k, c in enumerate(norm_chunks(*job)):
            self.a(*c)
            if k == 0:
                self.a("s_nop 2")

    def tr_addresses(self, dst):
        a, t, u = self.a, V_T, V_T2
        a(f"v_lshrrev_b32 v{t}, 5, v0", f"v_mul_u32_u24 v{dst}, 448, v{t}",
          f"v_bfe_u32 v{t}, v0, 2, 2", f"v_mad_u32_u24 v{dst}, v{t}, 56, v{dst}",
          f"v_and_b32 v{t}, 1, v0", f"v_lshl_add_u32 v{dst}, v{t}, 5, v{dst}",
          f"v_bfe_u32 v{t}, v0, 4, 1", f"v_lshl_add_u32 v{dst}, v{t}, 4, v{dst}",
          f"v_bfe_u32 v{t}, v0, 1, 1", f"v_lshl_add_u32 v{dst}, v{t}, 3, v{dst}",
          f"v_and_b32 v{t}, 19, v0", f"v_cmp_eq_u32 vcc, 19, v{t}",
          f"v_add_u32 v{dst+1}, {2048+896}, v{dst}", f"v_add_u32 v{dst}, 2048, v{dst}", f"v_mov_b32 v{u}, 3840",
          f"v_cndmask_b32 v{dst}, v{dst}, v{u}, vcc", f"v_cndmask_b32 v{dst+1}, v{dst+1}, v{u}, vcc")

    def finalize(self, R, X=None):
        a, fl = self.a, self.o.outfl
        add = lambda i: [f"v_pk_add_f32 {vr(R+2*i,2)}, {vr(R+2*i,2)}, {vr(X+2*i,2)}"] if X is not None else ["s_nop 0"]
        a(*add(6), f"v_mov_b32 v{V_T3}, v{R+12}", f"v_mov_b32 v{V_T4}, v{R+12}", *add(0), *add(1),
          f"v_permlane32_swap_b32 v{V_T3}, v{V_T4}", *add(2), f"v_rcp_f32 v{V_T4}, v{V_T4}", *add(3))
        for i in range(8):
            if X is not None and i in (4, 5, 7):
                a(*add(i))
            a(f"v_pk_mul_f32 {vr(R+2*i,2)}, {vr(R+2*i,2)}, {vr(V_T3,2)} op_sel:[0,1] op_sel_hi:[1,1]",
              f"v_cvt_pk_bf16_f32 v{R+i}, v{R+2*i}, v{R+2*i+1}")
            if i == 3:
                a(f"buffer_store_dwordx4 {vr(R,4)}, v{V_OUT}, {sr(S_O)}, s{S_QOFF} offen {fl}")
            if i == 5:
                a(f"buffer_store_dwordx2 {vr(R+4,2)}, v{V_OUT}, {sr(S_O)}, s{S_QOFF} offen offset:16 {fl}")
        a("s_mov_b32 exec_hi, 0",
          f"buffer_store_dwordx2 {vr(R+6,2)}, v{V_OUT}, {sr(S_O)}, s{S_QOFF} offen offset:24 {fl}",
          "s_mov_b32 exec_hi, -1")

    def prio(self, n):
        l = self.a.label("L_prio")
        return [f"s_cbranch_vccnz {l}", f"s_setprio {n}", f"{l}:"]

    def poll_block(self):
        return [f"s_cmp_lg_u32 s{S_CNT}, 6", "s_cbranch_scc1 L_ready", f"s_mov_b32 s{S_T}, 0",
                "L_poll:", "s_waitcnt vmcnt(0)",
                f"v_and_b32 v{V_XW}, v{V_XW}, v{V_XW+1}", f"v_and_b32 v{V_XW+2}, v{V_XW+2}, v{V_XW+3}",
                f"v_and_b32 v{V_XW}, v{V_XW}, v{V_XW+2}", f"s_add_u32 s{S_T}, s{S_T}, 1",
                f"v_readfirstlane_b32 s{S_T+1}, v{V_XW}",
                f"s_cmp_eq_u32 s{S_T+1}, 0xdddddddd", "s_cbranch_scc1 L_ready",
                FLAGLOAD, f"s_cmp_lt_u32 s{S_T}, {SPIN_LIMIT}", "s_cbranch_scc1 L_poll",
                "s_waitcnt vmcnt(0)", f"s_mov_b32 s{S_ABORT}, 1", "L_ready:"]

    def stage(self, kind):
        a, o = self.a, self.o
        sh = {(p, s): [] for p in range(16) for s in range(4)}
        post = {(p, s): [] for p in range(16) for s in range(4)}
        last, first, mid = kind == "last", kind == "first", kind == "mid"
        t0 = 16 - 4 * o.tail if last else 99
        unit = lambda t: (t // 4, t % 4) if t < t0 else (t0 // 4 + t - t0, 3)
        mf = {}
        for p in range(16):
            for f in range(2):
                mf[(p, f)] = qk(p + 1, f, *unit(p + 1))
                mf[(p, 2 + f)] = pv(p - 1, f, *unit(p - 1))
        if first:
            mf[(0, 2)] = mf[(0, 3)] = None
        if last:
            mf[(15, 0)], mf[(15, 1)], mf[(15, 2)], mf[(15, 3)] = mf[(15, 2)], mf[(15, 3)], None, None
        nvm = 0

        if not last:
            sh[(12, 2)] += ["s_waitcnt vmcnt(0) lgkmcnt(0)", "s_barrier", f"v_xor_b32 v{V_KA}, 0x10000, v{V_KA}"]
            post[(13, 2)] += [f"v_xor_b32 v{V_VA}, 0x10000, v{V_VA}", f"v_xor_b32 v{V_VA+1}, 0x10000, v{V_VA+1}"]
            sh[(13, 3)] += [f"s_xor_b32 s{S_L0}, s{S_L0}, 0x10000"]
        if mid:
            sh[(15, 3)] += [f"s_sub_u32 s{S_CNT}, s{S_CNT}, 1", f"s_cmp_lg_u32 s{S_CNT}, 0"]
            l = a.label("L_fl")
            sh[(o.poll_p - 2, 2)] += [f"s_cmp_lg_u32 s{S_CNT}, 6", f"s_cbranch_scc1 {l}", FLAGLOAD, f"{l}:"]
            sh[(o.poll_p, 0)] += self.poll_block()
            for g in range(4):
                half, part, p = g // 2, g % 2, o.poll_p + g
                sh[(p, 0)] += [f"s_add_u32 m0, s{S_L0}, {half*32768 + part*2048}"]
                if part == 0:
                    sh[(p - 2, 3)] += [f"s_cmp_ge_u32 s{S_G}, s{S_CM}", f"s_addc_u32 s{S_CH}, s{S_G}, 0"]
                    sh[(p - 1, 0)] += [f"s_add_u32 s{S_G}, s{S_G}, 1"]
                    sh[(p - 1, 3)] += [f"s_lshl_b32 s{S_GK}, s{S_CH}, 14", f"s_add_u32 s{S_GK}, s{S_GK}, s{S_WK}"]
                else:
                    sh[(p - 1, 3)] += [f"s_mul_i32 s{S_GV}, s{S_CH}, 14336", f"s_add_u32 s{S_GV}, s{S_GV}, s{S_WVV}"]
                for j in range(2):
                    sh[(p, 1 + j)] += dv(S_GV, j) if part else dk(S_GK, j)
        if o.prio:
            for k, p in enumerate(o.prio):
                if not (last and k == 0):
                    sh[(p, 1)] += self.prio(1 - k)

        for p in range(16):
            u, jj = p // 4 + 1, p % 4
            if jj == 1 and 4 * (u - 1) < t0:
                sh[(p, 1)].append(("need", [f"V{u-1}"]))
            if 4 * u >= t0 or (first and u == 2 and jj < 2):
                continue
            if jj == 2 and not (first and u == 2):
                sh[(p, 2)].append(("need", [f"K{u}"]))
            if jj < 2:
                sh[(p, 3)].append(("ds", rdk(u, jj), f"K{u}"))
            else:
                sh[(p, 2)].append(("ds", rdv(u, jj - 2, 0), f"V{u}"))
                sh[(p, 3)].append(("ds", rdv(u, jj - 2, 1), f"V{u}"))
        if first:
            ev = []
            def spread(R, p0, addr, off, tag):
                c = norm_chunks(R, VRT)
                slots = [(p0 + k // 4, k % 4) for k in range(8)]
                pos = [slots[0], slots[1], slots[3], slots[4], slots[6]]
                post[pos[0]].append(("wait", tag))
                for k in range(5):
                    post[pos[k]] += c[k]
                sh[slots[7]] += wfrag(addr, R, off)
                return slots[7]
            w = spread(VR, o.own_p, V_FW1, 32768, "Kown")
            sh[w] += [("ds", f"ds_read_b128 {vr(VR,4)}, v{V_T} offset:32768", "rb"), ("ds", f"ds_read_b128 {vr(VR+4,4)}, v{V_T} offset:33792", "rb")]
            st = (w[0] + 1, 2)
            sh[st].append(("need", ["rb"]))
            ev.append((st, [f"buffer_store_dwordx4 {vr(VR,4)}, v{V_L16}, {sr(S_W)}, s{S_GK} offen sc1"], "st0"))
            ev.append(((st[0], 3), [f"buffer_store_dwordx4 {vr(VR+4,4)}, v{V_L16}, {sr(S_W)}, s{S_GK} offen offset:1024 sc1"], "st"))
            spread(VR + 8, o.b_p, V_FW, 32768, "Kb")
            spread(VR + 16, o.c_p, V_FW1, 0, "Kc")
            p = o.vm_pos
            ev += [((p[0], 1), [ld4(VR + 16, S_K, S_N1)], "x"), ((p[0], 2), [ld3(VR + 16, S_K, S_N1)], "Kc"),
                   ((p[1], 1), dv(S_N1, 0), "x"), ((p[1], 2), dv(S_N1, 1), "x"),
                   ((p[2], 1), dv(S_QOFF, 0), "x"), ((p[2], 2), dv(S_QOFF, 1), "x")]
            sh[(p[1], 0)] += [f"s_add_u32 m0, s{S_L0}, 2048"]
            sh[(p[2], 0)] += [f"s_add_u32 m0, s{S_L0}, {32768 + 2048}"]
            ev.sort(key=lambda e: e[0])
            assert len({e[0] for e in ev}) == len(ev)
            for pos, ins, _ in ev:
                sh[pos] += ins
            order = ["x", "Ka", "x", "Q", "x", "Va", "x", "Kown", "x", "Kb", "x", "Vb"] + [e[2] for e in ev]
            def cnt(tag, pos, incl):
                n = 12 + sum(1 for e in ev if e[0] < pos or (incl and e[0] == pos))
                assert order.index(tag) < n
                return n - order.index(tag) - 1
            for pos in post:
                post[pos] = [f"s_waitcnt vmcnt({cnt(x[1], pos, True)})" if isinstance(x, tuple) and x[0] == "wait" else x for x in post[pos]]
            sh[(6, 0)] = [f"s_waitcnt vmcnt({cnt('Vb', (6, 0), False)}) lgkmcnt(0)", "s_barrier",
                          ("ds", rdk(2, 0), "K2"), ("ds", rdk(2, 1), "K2")] + sh[(6, 0)]
            sh[(6, 3)] = [("need", ["K2"])] + sh[(6, 3)]
            l = a.label("L_pub")
            pub = (o.pub_p, 0)
            sh[pub] = [f"s_waitcnt vmcnt({cnt('st', pub, False)})", "s_barrier",
                       f"s_cmp_lg_u32 s{S_WV}, 0", f"s_cbranch_scc1 {l}", "s_mov_b64 exec, 1",
                       f"buffer_store_byte v{V_IDX}, v0, {sr(S_D)}, s{S_C} offen sc1",
                       "s_mov_b64 exec, -1", f"{l}:"] + sh[pub]
            assert all(e[0] < pub for e in ev)
        if last:
            T = S_T
            sh[(0, 0)] += [f"s_lshl_b32 s{T+4}, s{S_QG}, 2"]
            for j in range(4):
                sh[(j, 1)] += [f"s_add_u32 s{T}, s{S_KS}, {1+j}"]
                sh[(j, 2)] += [f"s_and_b32 s{T}, s{T}, 3", f"s_add_u32 s{T}, s{T}, s{T+4}"]
                sh[(j, 3)] = [f"s_mul_i32 s{T}, s{T}, 12288", f"s_add_u32 s{T}, s{T}, {BUF0 + 4096 * (j % 3 if j < 3 else 0)}"] + sh[(j, 3)]
                post[(j, 3)] += [f"v_add_u32 v{V_XW+j}, s{T}, v{V_L16}"]
            for t in range(t0, 16):
                U, n = unit(t)[0], t
                for f in range(2):
                    sh[(t - 2, f)].append(("ds", rdk_abs(U, f, n), f"K{U}"))
                    vp = (t, f) if t > t0 else (t - 1, f)
                    sh[vp] += [("ds", rdv_abs(U, f, h, n), f"V{U}") for h in range(2)]
                sh[(t - 2, 3)].insert(0, ("need", [f"K{U}"]))
                if t < 14:
                    sh[(t + 1, 1)].insert(0, ("need", [f"V{U}"]))
            slots = [(p, s) for p in range(t0 - 2, 15) for s in (2, 3) if (t0 - 2, 2) <= (p, s) < o.xbar]
            items = [(j, g) for j in range(3) for g in range(4)]
            per = -(-len(items) // len(slots))
            k = 0
            for pos in slots:
                for _ in range(per):
                    if k < len(items) and pos >= (t0 - 2 + items[k][0], 2):
                        j, g = items[k]
                        sh[pos].append(f"ds_write_b128 v{V_XW+j}, {vr(VO+16*j+4*g,4)} offset:{1024*g}")
                        k += 1
            assert k == len(items)
            xr = lambda j: [("ds", f"ds_read_b128 {vr(VO+16*j+4*g,4)}, v{V_XW+3} offset:{4096*j+1024*g}", f"X{j}") for g in range(4)]
            post[(4, 3)] += [f"v_mov_b32 v{V_T}, {ABORT_WORD}"]
            sh[o.xbar] += [f"s_cmp_eq_u32 s{S_ABORT}, 0", "s_cbranch_scc1 L_noabort", f"ds_write_b32 v{V_T}, v{V_IDX}",
                           "L_noabort:", "s_waitcnt lgkmcnt(0)", "s_barrier",
                           ("ds", f"ds_read_b32 v{V_T2}, v{V_T}", "AB")] + xr(0) + xr(1)
            post[(14, 3)].append(("need", [f"V{unit(14)[0]}"]))
            post[(15, 1)] += [("need", ["X0"])] + xr(2)
            post[(15, 3)].append(("need", [f"V{unit(15)[0]}", "AB", "X1"]))

        stream = []
        for p in range(16):
            for s in range(4):
                if mf[(p, s)]:
                    stream.append(mf[(p, s)])
                stream += sh[(p, s)] + [ex(p, 4 * s + r) for r in range(4)] + post[(p, s)]
        out, q = resolve(stream, ["V0"] * 4)
        assert last or q == ["V4"] * len(q) and len(q) <= 4, q
        a(*out)
        self.last_unit = unit(15)[0]

    def prologue(self):
        a, o = self.a, self.o
        T = S_T
        a("s_cmp_ge_u32 s2, 256", "s_cbranch_scc1 L_end")
        self.stamp()
        a("s_load_dwordx8 s[4:11], s[0:1], 0", "s_load_dwordx4 s[12:15], s[0:1], 32", "s_load_dwordx2 s[16:17], s[0:1], 48")
        a(f"v_lshrrev_b32 v{V_T}, 6, v0", "v_and_b32 v0, 63, v0", f"v_readfirstlane_b32 s{S_WV}, v{V_T}",
          f"s_and_b32 s{S_HEAD}, s2, 7", f"s_lshl_b32 s{S_HEAD}, s{S_HEAD}, 1", f"s_lshr_b32 s{T}, s2, 7",
          f"s_add_u32 s{S_HEAD}, s{S_HEAD}, s{T}", f"s_bfe_u32 s{S_C}, s2, 0x40003",
          f"v_mul_u32_u24 v{V_ROW}, 28, v0", f"v_lshlrev_b32 v{V_L16}, 4, v0",
          f"s_mul_i32 s{T}, s{S_HEAD}, {HEAD_BYTES}", f"s_lshl_b32 s{T+1}, s{S_HEAD}, 18", f"s_lshl_b32 s{T+2}, s{S_HEAD}, 4",
          f"s_and_b32 s{T+3}, s{S_HEAD}, 14", f"s_lshl_b32 s{T+3}, s{T+3}, 1",
          f"s_mul_i32 s{S_WVV}, s{S_WV}, 1792", f"s_lshl_b32 s{S_WK}, s{S_WV}, 11",
          f"s_mul_i32 s{S_QOFF}, s{S_C}, 14336", f"s_add_u32 s{S_QOFF}, s{S_QOFF}, s{S_WVV}")
        for j, d in enumerate((S_GV, S_N0, S_N1)):
            a(f"s_cmp_le_u32 s{S_C}, {j}", f"s_cselect_b32 s{d}, {j+1}, {j}", f"s_mul_i32 s{d}, s{d}, 14336",
              f"s_add_u32 s{d}, s{d}, s{S_WVV}")
        a(f"s_lshl_b32 s{S_L0}, s{S_WV}, 12", f"s_add_u32 m0, s{S_L0}, {BUF0 + 2048}",
          f"s_and_b32 s{S_KS}, s{S_WV}, 3", f"s_lshr_b32 s{S_QG}, s{S_WV}, 2",
          f"s_mov_b32 s{S_M48}, -1", f"s_mov_b32 s{S_M48+1}, 0xffff")
        self.tr_addresses(V_KB + 1)
        a("s_waitcnt lgkmcnt(0)")
        self.stamp(True)
        self.srd(S_K, 6, T, HEAD_BYTES)
        a(ld4(VS, S_K, S_GV), ld3(VS, S_K, S_GV))
        self.srd(S_Q, 4, T, HEAD_BYTES)
        a(ld4(VS + 8, S_Q, S_QOFF), ld3(VS + 8, S_Q, S_QOFF), f"s_load_dword s{S_TB}, s[10:11], s{T+3}")
        self.srd(S_V, 8, T, HEAD_BYTES)
        a(*dv(S_GV, 0), *dv(S_GV, 1))
        later = [ld4(VR, S_K, S_QOFF), ld3(VR, S_K, S_QOFF), f"s_add_u32 m0, s{S_L0}, {BUF0 + 32768 + 2048}",
                 ld4(VR + 8, S_K, S_N0), ld3(VR + 8, S_K, S_N0), *dv(S_N0, 0), *dv(S_N0, 1)]
        self.stamp(True)
        a(*[f"v_mov_b32 v{VV+i}, 0" for i in range(4)])
        a(f"v_mov_b32 v{VK}, 0x3f80", f"v_mov_b32 v{VK+1}, 0", f"v_mov_b32 v{VK+2}, 0x3f80", f"v_mov_b32 v{VK+3}, 0")
        zero = lambda b: f"v_mfma_f32_32x32x16_bf16 {O(b)}, {vr(VV,4)}, {vr(VV,4)}, 0"
        a(zero(0),
          f"v_lshlrev_b32 v{V_T}, 11, v0", f"v_and_b32 v{V_T}, 0x18000, v{V_T}",
          f"v_and_b32 v{V_T2}, 0xf0, v{V_L16}", f"v_add3_u32 v{V_T}, v{V_T}, v{V_T2}, s{S_L0}",
          f"ds_write_b128 v{V_T}, {vr(VK,4)} offset:3840",
          zero(1),
          f"v_and_b32 v{V_T}, 1, v0", f"v_lshlrev_b32 v{V_T}, 9, v{V_T}", f"v_lshrrev_b32 v{V_FW1}, 1, v0",
          f"v_lshl_add_u32 v{V_T}, v{V_FW1}, 4, v{V_T}", f"v_add_u32 v{V_FW1}, s{S_L0}, v{V_T}",
          f"s_add_u32 s{T+5}, s{S_WK}, {QAREA}",
          f"v_add_u32 v{V_FW}, {BUF0}, v{V_FW1}", f"v_add_u32 v{V_T3}, s{T+5}, v{V_T}",
          zero(2),
          f"s_lshl_b32 s{T+5}, s{S_KS}, 12", f"s_add_u32 s{T+5}, s{T+5}, {BUF0}",
          f"v_add_u32 v{V_KA}, s{T+5}, v{V_L16}", f"v_add_u32 v{V_VA}, s{T+5}, v{V_KB+1}", f"v_add_u32 v{V_VA+1}, s{T+5}, v{V_KB+2}",
          f"v_mov_b32 v{V_KB}, v{V_L16}", f"v_mov_b32 v{V_IDX}, 0xdddddddd", f"v_mov_b32 v{VS+7}, 0x3f80",
          zero(3),
          f"v_and_b32 v{V_T}, 31, v0", f"v_mul_u32_u24 v{V_T}, 56, v{V_T}", f"v_lshrrev_b32 v{V_T2}, 5, v0",
          f"v_lshl_add_u32 v{V_OUT}, v{V_T2}, 5, v{V_T}", *[f"v_mov_b32 v{VR+8*i+7}, 0x3f80" for i in range(3)])
        self.srd(S_O, 12, T, HEAD_BYTES)
        self.srd(S_W, 16, T + 1, WSK_HEAD)
        self.srd(S_D, 14, T + 2, 16)
        a(f"s_lshl_b32 s{T+5}, s{S_QG}, 13", f"s_add_u32 s{T+5}, s{T+5}, {QAREA}")
        for j in range(4):
            a(f"s_add_u32 s{T+4}, s{S_KS}, {1+j}", f"s_and_b32 s{T+4}, s{T+4}, 3", f"s_lshl_b32 s{T+4}, s{T+4}, 11",
              f"s_add_u32 s{T+4}, s{T+4}, s{T+5}", f"v_add_u32 v{V_XW+j}, s{T+4}, v{V_L16}")
        a(f"s_lshl_b32 s{S_GK}, s{S_C}, 14", f"s_add_u32 s{S_GK}, s{S_GK}, s{S_WK}",
          f"s_max_u32 s{S_CM}, s{S_C}, 3", f"s_mov_b32 s{S_G}, 3",
          f"s_mov_b32 s{S_ABORT}, 0", f"s_mov_b32 s{S_CNT}, 6", f"s_cmp_lt_u32 s{S_WV}, 4", "s_cselect_b64 vcc, -1, 0")
        if o.later == 0:
            a(*later)
        self.stamp(True)
        a(f"s_waitcnt vmcnt({10 if o.later == 0 else 4})")
        self.stamp()
        self.normalize(VS, VS + 16)
        a(*wfrag(V_FW, VS, 0))
        if o.later == 1:
            a(*later)
        a("s_waitcnt lgkmcnt(0)",
          f"s_bitcmp1_b32 s{S_HEAD}, 0", f"s_cselect_b32 s{T+3}, 16, 0", f"s_lshr_b32 s{S_TB}, s{S_TB}, s{T+3}",
          f"s_and_b32 s{T+3}, s{S_TB}, 0x7fff", f"s_lshl_b32 s{S_TB}, s{S_TB}, 16",
          f"v_mov_b32 v{V_T}, {hex(LOG2E)}", f"v_mul_f32 v{V_T}, s{S_TB}, v{V_T}",
          f"s_cmp_gt_u32 s{T+3}, {hex(T_LIMIT)}", f"v_readfirstlane_b32 s{S_SC}, v{V_T}",
          f"v_mul_f32 v{V_T2}, -0.5, abs(v{V_T})", f"v_cvt_pk_bf16_f32 v{VS+15}, v{V_T2}, 0",
          "s_cbranch_scc1 L_slow", f"v_add_u32 v{V_T}, s{S_L0}, v{V_L16}")
        a(f"s_waitcnt vmcnt({8 if o.later < 2 else 2})")
        self.stamp(True)
        self.normalize(VS + 8, VS + 16, S_SC)
        a(*wfrag(V_T3, VS + 8, 0))
        if o.later == 2:
            a(*later)
        self.stamp(True)
        a("s_waitcnt vmcnt(6) lgkmcnt(0)", "s_barrier")
        self.stamp()
        a(rdk(0, 0), rdk(0, 1))
        for j in range(4):
            a(f"ds_read_b128 {Q(j,0)}, v{V_XW+j}", f"ds_read_b128 {Q(j,1)}, v{V_XW+j} offset:1024")
        a(rdv(0, 0, 0), rdv(0, 0, 1), rdv(0, 1, 0), rdv(0, 1, 1))
        if o.prio:
            a(*self.prio(1))
        a("s_waitcnt lgkmcnt(10)", qk(0, 0, 0, 0), qk(0, 1, 0, 0), "s_waitcnt lgkmcnt(4)", "s_nop 7", "s_nop 1")

    def epilogue(self):
        a = self.a
        U = self.last_unit
        a(pv(15, 0, U, 3), f"v_readfirstlane_b32 s{S_T}, v{V_T2}", pv(15, 1, U, 3),
          f"s_cmp_lg_u32 s{S_T}, 0", "s_cbranch_scc1 L_slow")
        a(*[f"v_pk_add_f32 {vr(VO+2*i,2)}, {vr(VO+2*i,2)}, {vr(VO+16+2*i,2)}" for i in range(8)])
        a("s_waitcnt lgkmcnt(0)")
        a(*[f"v_pk_add_f32 {vr(VO+2*i,2)}, {vr(VO+2*i,2)}, {vr(VO+32+2*i,2)}" for i in range(8)])
        self.finalize(VO + 48, VO)

    def slow(self):
        a = self.a
        KR, TT, M, MN, AL = VS + 16, VS + 40, VS + 48, VS + 49, VS + 50
        a("L_slow:", "s_setprio 0", "s_waitcnt vmcnt(0) lgkmcnt(0)", "s_barrier")
        a(ld4(KR, S_Q, S_QOFF), ld3(KR, S_Q, S_QOFF))
        a(f"s_lshl_b32 s{S_L0}, s{S_WV}, 12", f"v_add_u32 v{V_XW}, s{S_L0}, v{V_L16}",
          f"v_mov_b32 v{VK}, 0x3f80", f"v_mov_b32 v{VK+1}, 0", f"v_mov_b32 v{VK+2}, 0x3f80", f"v_mov_b32 v{VK+3}, 0",
          "s_mov_b64 exec, 0xffff", f"ds_write_b128 v{V_XW}, {vr(VK,4)} offset:3840", "s_mov_b64 exec, -1",
          f"v_mov_b32 v{KR+7}, 0", f"v_mov_b32 v{M}, 0xff800000", "s_nop 7")
        a(*[f"v_mov_b32 v{VO+r}, 0" for r in range(16)])
        a("s_waitcnt vmcnt(0)")
        self.normalize(KR, TT, S_SC)
        a(*wfrag(V_FW1, KR, 0), f"ds_read_b128 {Q(0,0)}, v{V_XW}", f"ds_read_b128 {Q(0,1)}, v{V_XW} offset:1024",
          "s_waitcnt lgkmcnt(0)")
        a(f"s_mov_b32 s{S_GV}, s{S_WVV}", f"s_mov_b32 s{S_CNT}, 16", "L_slow_group:")
        a(ld4(KR, S_K, S_GV), ld3(KR, S_K, S_GV), f"s_add_u32 m0, s{S_L0}, 2048", "s_nop 0", *dv(S_GV, 0), *dv(S_GV, 1),
          "s_waitcnt vmcnt(0)")
        self.normalize(KR, TT)
        a(*wfrag(V_FW1, KR, 0),
          f"v_mov_b32 v{V_KA}, v{V_L16}", f"v_mov_b32 v{V_VA}, v{V_KB+1}", f"v_mov_b32 v{V_VA+1}, v{V_KB+2}",
          f"s_mov_b32 s{S_G}, 8", "s_waitcnt lgkmcnt(0)", "s_barrier", "L_slow_tile:")
        a(rdk(0, 0), rdk(0, 1), rdv(0, 0, 0), rdv(0, 0, 1), rdv(0, 1, 0), rdv(0, 1, 1))
        a("s_waitcnt lgkmcnt(0)", qk(0, 0, 0, 0), qk(0, 1, 0, 0), "s_nop 15")
        a(f"v_max3_f32 v{MN}, v{VS}, v{VS+1}, v{M}")
        for r in range(2, 16, 2):
            a(f"v_max3_f32 v{MN}, v{VS+r}, v{VS+r+1}, v{MN}")
        a(f"v_mov_b32 v{AL}, v{MN}", "s_nop 1", f"v_permlane32_swap_b32 v{MN}, v{AL}", "s_nop 1",
          f"v_max_f32 v{MN}, v{MN}, v{AL}", f"v_sub_f32 v{AL}, v{M}, v{MN}", f"v_exp_f32 v{AL}, v{AL}", f"v_mov_b32 v{M}, v{MN}")
        for r in range(16):
            a(f"v_sub_f32 v{VS+r}, v{VS+r}, v{MN}", f"v_mul_f32 v{VO+r}, v{AL}, v{VO+r}")
        a(*[ex(0, r) for r in range(16)])
        a("s_nop 1", pv(0, 0, 0, 0), pv(0, 1, 0, 0),
          f"v_add_u32 v{V_KA}, 4096, v{V_KA}", f"v_add_u32 v{V_VA}, 4096, v{V_VA}", f"v_add_u32 v{V_VA+1}, 4096, v{V_VA+1}",
          "s_nop 15", f"s_sub_u32 s{S_G}, s{S_G}, 1", f"s_cmp_lg_u32 s{S_G}, 0", "s_cbranch_scc1 L_slow_tile")
        a("s_barrier", f"s_add_u32 s{S_GV}, s{S_GV}, 14336", f"s_sub_u32 s{S_CNT}, s{S_CNT}, 1", f"s_cmp_lg_u32 s{S_CNT}, 0",
          "s_cbranch_scc1 L_slow_group")
        self.finalize(VO)
        a("s_endpgm")

    def build(self):
        a, o = self.a, self.o
        n = "standalone__qk_norm__prompt_kernel"
        a('.amdgcn_target "amdgcn-amd-amdhsa--gfx950"', ".text", f".globl {n}", ".p2align 8", f".type {n},@function", f"{n}:")
        self.prologue()
        self.stage("first")
        self.stamp()
        a(".p2align 3", "L_loop:")
        self.stage("mid")
        a("s_cbranch_scc1 L_loop")
        self.stamp()
        self.stage("last")
        self.stamp()
        self.epilogue()
        self.stamp(True)
        if o.stamps:
            a("s_waitcnt vmcnt(0)")
        self.stamp()
        self.stamp_flush()
        a("L_end:", "s_endpgm")
        self.slow()
        kd = f""".section .rodata,"a"
.p2align 6
.amdhsa_kernel {n}
  .amdhsa_next_free_vgpr {NV}
  .amdhsa_next_free_sgpr {102 if o.stamps else 72}
  .amdhsa_accum_offset {(NV + 3) // 4 * 4}
  .amdhsa_group_segment_fixed_size 0
  .amdhsa_kernarg_size 56
  .amdhsa_user_sgpr_count 2
  .amdhsa_user_sgpr_kernarg_segment_ptr 1
  .amdhsa_system_sgpr_workgroup_id_x 1
.end_amdhsa_kernel
"""
        return HEADER + a.text() + kd


if __name__ == "__main__":
    tup = lambda s: tuple(map(int, s.split(","))) if s != "none" else None
    ap = argparse.ArgumentParser()
    ap.add_argument("out")
    ap.add_argument("--stamps", action="store_true")
    ap.add_argument("--fine", action="store_true")
    ap.add_argument("--prio", type=tup, default=(13, 10))
    ap.add_argument("--poll_p", type=int, default=4)
    ap.add_argument("--vm_pos", type=tup, default=(4, 5, 6))
    ap.add_argument("--later", type=int, default=1)
    ap.add_argument("--own_p", type=int, default=1)
    ap.add_argument("--b_p", type=int, default=4)
    ap.add_argument("--c_p", type=int, default=9)
    ap.add_argument("--pub_p", type=int, default=9)
    ap.add_argument("--xbar", type=tup, default=(14, 3))
    ap.add_argument("--outfl", default="")
    ap.add_argument("--tail", type=int, default=2)
    o = ap.parse_args()
    g = Gen(o)
    open(o.out, "w").write(g.build())
    print("stamps:", g.nst)
```

```python
import argparse

HEADER = """; Kernarg layout for this problem (56 bytes, ptrs only, base s[0:1]):
; @launch grid=(256,1,1) block=(512,1,1) lds=163840
;
"""

HEAD_BYTES = 4096 * 56
WSK_HEAD = 128 * 2048
LOG2E = 0x3FB8AA3B
EPS = 0x358637BD
T_LIMIT = 0x41A6
BUF0, QAREA = 0x10000, 0x20000
ABORT_WORD = 3852
SPIN_LIMIT = 1 << 16

V_LANE, V_T, V_ROW, V_L16, V_KA, V_OUT, V_T2, V_IDX = 0, 1, 2, 3, 4, 5, 6, 7
V_VA = 8
V_XW = 10
V_T3, V_T4 = 14, 15
VQ, VO, VS, VK, VV = 16, 48, 112, 176, 192
VR, VRT = 208, 232
V_FW = 240
V_FW1 = 241
V_KB = 242
NV = 245

S_Q, S_K, S_V, S_O, S_W, S_D = 20, 24, 28, 32, 36, 40
S_HEAD, S_C, S_WV, S_KS, S_QG = 44, 45, 46, 47, 48
S_G, S_GK, S_GV, S_L0, S_N0, S_CNT, S_WK, S_WVV = 49, 50, 51, 52, 53, 54, 55, 56
S_TB, S_SC, S_ABORT, S_QOFF, S_N1 = 57, 58, 59, 60, 61
S_CM, S_CH = 18, 19
S_M48 = 62
S_T = 64
S_ST = 72


class Asm:
    def __init__(self):
        self.lines = []
        self.n = 0

    def __call__(self, *ls):
        for l in ls:
            self.lines.append(l if l.endswith(":") or l.startswith(".") else "    " + l)

    def label(self, base):
        self.n += 1
        return f"{base}_{self.n}"

    def text(self):
        return "\n".join(self.lines) + "\n"


def vr(b, n): return f"v[{b}:{b+n-1}]"
def sr(b): return f"s[{b}:{b+3}]"
def S(t, o=0, n=16): return vr(VS + 16 * (t % 4) + o, n)
def K(u, f): return vr(VK + 8 * (u % 2) + 4 * f, 4)
def V(u, f): return vr(VV + 8 * (u % 2) + 4 * f, 4)
def Vh(u, f, h): return vr(VV + 8 * (u % 2) + 4 * f + 2 * h, 2)
def Q(b, f): return vr(VQ + 8 * b + 4 * f, 4)
def O(b): return vr(VO + 16 * b, 16)
def qk(t, f, u, b): return f"v_mfma_f32_32x32x16_bf16 {S(t)}, {K(u,f)}, {Q(b,f)}, {S(t) if f else 0}"
def pv(t, f, u, b): return f"v_smfmac_f32_32x32x32_bf16 {O(b)}, {V(u,f)}, {S(t,8*f,8)}, v{V_IDX}"
def rdk(u, f): return f"ds_read_b128 {K(u,f)}, v{V_KA} offset:{(u%4)*16384+1024*f}"
def rdv(u, f, h): return f"ds_read_b64_tr_b16 {Vh(u,f,h)}, v{V_VA+f} offset:{(u%4)*16384+224*h}"
def rdk_abs(u, f, n): return f"ds_read_b128 {K(u,f)}, v{V_KB} offset:{n*4096+1024*f}"
def rdv_abs(u, f, h, n): return f"ds_read_b64_tr_b16 {Vh(u,f,h)}, v{V_KB+1+f} offset:{n*4096+224*h}"


def resolve(stream, pending):
    out, q = [], list(pending)
    for x in stream:
        if isinstance(x, tuple) and x[0] == "need":
            idx = [i for i, t in enumerate(q) if t in x[1]]
            if idx:
                q = q[max(idx) + 1:]
                assert len(q) <= 15
                out.append(f"s_waitcnt lgkmcnt({len(q)})")
            continue
        text, tag = (x[1], x[2]) if isinstance(x, tuple) else (x, None)
        if text.startswith("ds_"):
            q.append(tag)
        elif "lgkmcnt(" in text:
            n = int(text.split("lgkmcnt(")[1].split(")")[0])
            q = q[len(q) - n:] if n and len(q) > n else ([] if n == 0 else q)
        out.append(text)
    return out, q
def ex(t, r): return f"v_exp_f32 v{VS+16*(t%4)+r}, v{VS+16*(t%4)+r}"
def ld4(R, srd, so): return f"buffer_load_dwordx4 {vr(R,4)}, v{V_ROW}, {sr(srd)}, s{so} offen"
def ld3(R, srd, so): return f"buffer_load_dwordx3 {vr(R+4,3)}, v{V_ROW}, {sr(srd)}, s{so} offen offset:16"
def dk(so, j): return [f"buffer_load_dwordx4 v{V_L16}, {sr(S_W)}, s{so} offen offset:{1024*j} sc1 lds"]
def dv(so, j):
    ins = f"buffer_load_dwordx4 v{V_L16}, {sr(S_V)}, s{so} offen offset:{1024*j} lds"
    return [f"s_mov_b64 exec, s[{S_M48}:{S_M48+1}]", ins, "s_mov_b64 exec, -1"] if j else [ins]
def wfrag(addr, R, off): return [f"ds_write_b128 v{addr}, {vr(R,4)} offset:{off}", f"ds_write_b128 v{addr}, {vr(R+4,4)} offset:{off+1024}"]
FLAGLOAD = f"buffer_load_dwordx4 {vr(V_XW,4)}, off, {sr(S_D)}, 0 sc1"


def norm_chunks(R, T, s_scale=None):
    un = lambda i, p: [f"v_lshlrev_b32 v{p}, 16, v{R+i}", f"v_and_b32 v{p+1}, 0xffff0000, v{R+i}"]
    c = [[f"v_dot2_f32_bf16 v{T}, v{R}, v{R}, 0", f"v_dot2_f32_bf16 v{T+1}, v{R+1}, v{R+1}, 0"]
         + [f"v_dot2_f32_bf16 v{T+i%2}, v{R+i}, v{R+i}, v{T+i%2}" for i in range(2, 7)]]
    c.append([f"v_add_f32 v{T}, v{T}, v{T+1}"] + un(0, T + 2)
             + [f"v_add_f32_dpp v{T}, v{T}, v{T} quad_perm:[1,0,3,2] row_mask:0xf bank_mask:0xf",
                f"v_sqrt_f32 v{T}, v{T}", un(1, T + 4)[0], f"v_add_f32 v{T}, {hex(EPS)}, v{T}",
                f"v_rcp_f32 v{T}, v{T}", un(1, T + 4)[1]])
    x = [f"v_mul_f32 v{T}, s{s_scale}, v{T}"] if s_scale is not None else []
    for i in range(7):
        p = T + 2 + 2 * (i % 3)
        if i + 2 < 7:
            x += un(i + 2, T + 2 + 2 * ((i + 2) % 3))
        x += [f"v_pk_mul_f32 {vr(p,2)}, {vr(p,2)}, {vr(T,2)} op_sel_hi:[1,0]", f"v_cvt_pk_bf16_f32 v{R+i}, v{p}, v{p+1}"]
        if i in (1, 3, 6):
            c.append(x)
            x = []
    return c


class Gen:
    def __init__(self, o):
        self.o = o
        self.a = Asm()
        self.nst = 0

    def stamp(self, fine=False):
        if self.o.stamps and (self.o.fine or not fine):
            j = self.nst
            self.a("s_memtime s[100:101]", "s_memrealtime s[98:99]", "s_waitcnt lgkmcnt(0)",
                   f"s_mov_b32 s{S_ST+2*j}, s100", f"s_mov_b32 s{S_ST+2*j+1}, s98")
            self.nst += 1

    def stamp_flush(self):
        if not self.o.stamps:
            return
        a, n = self.a, self.nst
        a("s_add_u32 s4, s16, 0x4000000", "s_addc_u32 s5, s17, 0", "s_mov_b32 s6, 0x100000", "s_mov_b32 s7, 0x00020000",
          "s_lshl_b32 s8, s2, 3", f"s_add_u32 s8, s8, s{S_WV}", f"s_mul_i32 s8, s8, {8*n}", "v_mov_b32 v1, 0", "s_mov_b64 exec, 1")
        for j in range(n):
            a(f"v_mov_b32 v14, s{S_ST+2*j}", f"v_mov_b32 v15, s{S_ST+2*j+1}",
              f"buffer_store_dwordx2 v[14:15], v1, s[4:7], s8 offen offset:{8*j}", "s_nop 1")

    def srd(self, d, base, s_off, nbytes):
        self.a(f"s_add_u32 s{d}, s{base}, s{s_off}", f"s_addc_u32 s{d+1}, s{base+1}, 0",
               f"s_mov_b32 s{d+2}, {nbytes}", f"s_mov_b32 s{d+3}, 0x00020000")

    def normalize(self, *job):
        for k, c in enumerate(norm_chunks(*job)):
            self.a(*c)
            if k == 0:
                self.a("s_nop 2")

    def tr_addresses(self, dst):
        a, t, u = self.a, V_T, V_T2
        a(f"v_lshrrev_b32 v{t}, 5, v0", f"v_mul_u32_u24 v{dst}, 448, v{t}",
          f"v_bfe_u32 v{t}, v0, 2, 2", f"v_mad_u32_u24 v{dst}, v{t}, 56, v{dst}",
          f"v_and_b32 v{t}, 1, v0", f"v_lshl_add_u32 v{dst}, v{t}, 5, v{dst}",
          f"v_bfe_u32 v{t}, v0, 4, 1", f"v_lshl_add_u32 v{dst}, v{t}, 4, v{dst}",
          f"v_bfe_u32 v{t}, v0, 1, 1", f"v_lshl_add_u32 v{dst}, v{t}, 3, v{dst}",
          f"v_and_b32 v{t}, 19, v0", f"v_cmp_eq_u32 vcc, 19, v{t}",
          f"v_add_u32 v{dst+1}, {2048+896}, v{dst}", f"v_add_u32 v{dst}, 2048, v{dst}", f"v_mov_b32 v{u}, 3840",
          f"v_cndmask_b32 v{dst}, v{dst}, v{u}, vcc", f"v_cndmask_b32 v{dst+1}, v{dst+1}, v{u}, vcc")

    def finalize(self, R, X=None):
        a, fl = self.a, self.o.outfl
        add = lambda i: [f"v_pk_add_f32 {vr(R+2*i,2)}, {vr(R+2*i,2)}, {vr(X+2*i,2)}"] if X is not None else ["s_nop 0"]
        a(*add(6), f"v_mov_b32 v{V_T3}, v{R+12}", f"v_mov_b32 v{V_T4}, v{R+12}", *add(0), *add(1),
          f"v_permlane32_swap_b32 v{V_T3}, v{V_T4}", *add(2), f"v_rcp_f32 v{V_T4}, v{V_T4}", *add(3))
        for i in range(8):
            if X is not None and i in (4, 5, 7):
                a(*add(i))
            a(f"v_pk_mul_f32 {vr(R+2*i,2)}, {vr(R+2*i,2)}, {vr(V_T3,2)} op_sel:[0,1] op_sel_hi:[1,1]",
              f"v_cvt_pk_bf16_f32 v{R+i}, v{R+2*i}, v{R+2*i+1}")
            if self.o.ldsout:
                if i in (1, 3, 5):
                    a(f"ds_write_b64 v{V_KA}, {vr(R+i-1,2)} offset:{4*(i-1)}")
                continue
            if i == 3:
                a(f"buffer_store_dwordx4 {vr(R,4)}, v{V_OUT}, {sr(S_O)}, s{S_QOFF} offen {fl}")
            if i == 5:
                a(f"buffer_store_dwordx2 {vr(R+4,2)}, v{V_OUT}, {sr(S_O)}, s{S_QOFF} offen offset:16 {fl}")
        if self.o.ldsout:
            a("s_mov_b32 exec_hi, 0", f"ds_write_b64 v{V_KA}, {vr(R+6,2)} offset:24", "s_mov_b32 exec_hi, -1",
              f"ds_read_b128 {vr(R+8,4)}, v{V_VA}", f"ds_read_b128 {vr(R+12,4)}, v{V_VA} offset:1024", "s_waitcnt lgkmcnt(1)",
              f"buffer_store_dwordx4 {vr(R+8,4)}, v{V_L16}, {sr(S_O)}, s{S_QOFF} offen {fl}",
              f"s_mov_b64 exec, s[{S_M48}:{S_M48+1}]", "s_waitcnt lgkmcnt(0)",
              f"buffer_store_dwordx4 {vr(R+12,4)}, v{V_L16}, {sr(S_O)}, s{S_QOFF} offen offset:1024 {fl}",
              "s_mov_b64 exec, -1")
            return
        a("s_mov_b32 exec_hi, 0",
          f"buffer_store_dwordx2 {vr(R+6,2)}, v{V_OUT}, {sr(S_O)}, s{S_QOFF} offen offset:24 {fl}",
          "s_mov_b32 exec_hi, -1")

    def prio(self, n):
        l = self.a.label("L_prio")
        return [f"s_cbranch_vccnz {l}", f"s_setprio {n}", f"{l}:"]

    def poll_block(self):
        return [f"s_cmp_lg_u32 s{S_CNT}, 6", "s_cbranch_scc1 L_ready", f"s_mov_b32 s{S_T}, 0",
                "L_poll:", "s_waitcnt vmcnt(0)",
                f"v_and_b32 v{V_XW}, v{V_XW}, v{V_XW+1}", f"v_and_b32 v{V_XW+2}, v{V_XW+2}, v{V_XW+3}",
                f"v_and_b32 v{V_XW}, v{V_XW}, v{V_XW+2}", f"s_add_u32 s{S_T}, s{S_T}, 1",
                f"v_readfirstlane_b32 s{S_T+1}, v{V_XW}",
                f"s_cmp_eq_u32 s{S_T+1}, 0xdddddddd", "s_cbranch_scc1 L_ready",
                FLAGLOAD, f"s_cmp_lt_u32 s{S_T}, {SPIN_LIMIT}", "s_cbranch_scc1 L_poll",
                "s_waitcnt vmcnt(0)", f"s_mov_b32 s{S_ABORT}, 1", "L_ready:"]

    def stage(self, kind):
        a, o = self.a, self.o
        sh = {(p, s): [] for p in range(16) for s in range(4)}
        post = {(p, s): [] for p in range(16) for s in range(4)}
        last, first, mid = kind == "last", kind == "first", kind == "mid"
        t0 = 16 - 4 * o.tail if last else 99
        unit = lambda t: (t // 4, t % 4) if t < t0 else (t0 // 4 + t - t0, 3)
        mf = {}
        for p in range(16):
            for f in range(2):
                mf[(p, f)] = qk(p + 1, f, *unit(p + 1))
                mf[(p, 2 + f)] = pv(p - 1, f, *unit(p - 1))
        if first:
            mf[(0, 2)] = mf[(0, 3)] = None
        if last:
            mf[(15, 0)], mf[(15, 1)], mf[(15, 2)], mf[(15, 3)] = mf[(15, 2)], mf[(15, 3)], None, None
        nvm = 0

        if not last:
            sh[(12, 2)] += ["s_waitcnt vmcnt(0) lgkmcnt(0)", "s_barrier", f"v_xor_b32 v{V_KA}, 0x10000, v{V_KA}"]
            post[(13, 2)] += [f"v_xor_b32 v{V_VA}, 0x10000, v{V_VA}", f"v_xor_b32 v{V_VA+1}, 0x10000, v{V_VA+1}"]
            sh[(13, 3)] += [f"s_xor_b32 s{S_L0}, s{S_L0}, 0x10000"]
        if mid:
            sh[(15, 3)] += [f"s_sub_u32 s{S_CNT}, s{S_CNT}, 1", f"s_cmp_lg_u32 s{S_CNT}, 0"]
            l = a.label("L_fl")
            sh[(o.poll_p - 2, 2)] += [f"s_cmp_lg_u32 s{S_CNT}, 6", f"s_cbranch_scc1 {l}", FLAGLOAD, f"{l}:"]
            sh[(o.poll_p, 0)] += self.poll_block()
            for g in range(4):
                half, part, p = g // 2, g % 2, o.poll_p + g
                sh[(p, 0)] += [f"s_add_u32 m0, s{S_L0}, {half*32768 + part*2048}"]
                if part == 0:
                    sh[(p - 2, 3)] += [f"s_cmp_ge_u32 s{S_G}, s{S_CM}", f"s_addc_u32 s{S_CH}, s{S_G}, 0"]
                    sh[(p - 1, 0)] += [f"s_add_u32 s{S_G}, s{S_G}, 1"]
                    sh[(p - 1, 3)] += [f"s_lshl_b32 s{S_GK}, s{S_CH}, 14", f"s_add_u32 s{S_GK}, s{S_GK}, s{S_WK}"]
                else:
                    sh[(p - 1, 3)] += [f"s_mul_i32 s{S_GV}, s{S_CH}, 14336", f"s_add_u32 s{S_GV}, s{S_GV}, s{S_WVV}"]
                for j in range(2):
                    sh[(p, 1 + j)] += dv(S_GV, j) if part else dk(S_GK, j)
        if o.prio:
            for k, p in enumerate(o.prio):
                if not (last and k == 0):
                    sh[(p, 1)] += self.prio(1 - k)

        for p in range(16):
            u, jj = p // 4 + 1, p % 4
            if jj == 1 and 4 * (u - 1) < t0:
                sh[(p, 1)].append(("need", [f"V{u-1}"]))
            if 4 * u >= t0 or (first and u == 2 and jj < 2):
                continue
            if jj == 2 and not (first and u == 2):
                sh[(p, 2)].append(("need", [f"K{u}"]))
            if jj < 2:
                sh[(p, 3)].append(("ds", rdk(u, jj), f"K{u}"))
            else:
                sh[(p, 2)].append(("ds", rdv(u, jj - 2, 0), f"V{u}"))
                sh[(p, 3)].append(("ds", rdv(u, jj - 2, 1), f"V{u}"))
        if first:
            ev = []
            def spread(R, p0, addr, off, tag):
                c = norm_chunks(R, VRT)
                slots = [(p0 + k // 4, k % 4) for k in range(8)]
                pos = [slots[0], slots[1], slots[3], slots[4], slots[6]]
                post[pos[0]].append(("wait", tag))
                for k in range(5):
                    post[pos[k]] += c[k]
                sh[slots[7]] += wfrag(addr, R, off)
                return slots[7]
            w = spread(VR, o.own_p, V_FW1, 32768, "Kown")
            sh[w] += [("ds", f"ds_read_b128 {vr(VR,4)}, v{V_T} offset:32768", "rb"), ("ds", f"ds_read_b128 {vr(VR+4,4)}, v{V_T} offset:33792", "rb")]
            st = (w[0] + 1, 2)
            sh[st].append(("need", ["rb"]))
            ev.append((st, [f"buffer_store_dwordx4 {vr(VR,4)}, v{V_L16}, {sr(S_W)}, s{S_GK} offen sc1"], "st0"))
            ev.append(((st[0], 3), [f"buffer_store_dwordx4 {vr(VR+4,4)}, v{V_L16}, {sr(S_W)}, s{S_GK} offen offset:1024 sc1"], "st"))
            spread(VR + 8, o.b_p, V_FW, 32768, "Kb")
            spread(VR + 16, o.c_p, V_FW1, 0, "Kc")
            p = o.vm_pos
            ev += [((p[0], 1), [ld4(VR + 16, S_K, S_N1)], "x"), ((p[0], 2), [ld3(VR + 16, S_K, S_N1)], "Kc"),
                   ((p[1], 1), dv(S_N1, 0), "x"), ((p[1], 2), dv(S_N1, 1), "x"),
                   ((p[2], 1), dv(S_QOFF, 0), "x"), ((p[2], 2), dv(S_QOFF, 1), "x")]
            sh[(p[1], 0)] += [f"s_add_u32 m0, s{S_L0}, 2048"]
            sh[(p[2], 0)] += [f"s_add_u32 m0, s{S_L0}, {32768 + 2048}"]
            ev.sort(key=lambda e: e[0])
            assert len({e[0] for e in ev}) == len(ev)
            for pos, ins, _ in ev:
                sh[pos] += ins
            order = ["x", "Ka", "x", "Q", "x", "Va", "x", "Kown", "x", "Kb", "x", "Vb"] + [e[2] for e in ev]
            def cnt(tag, pos, incl):
                n = 12 + sum(1 for e in ev if e[0] < pos or (incl and e[0] == pos))
                assert order.index(tag) < n
                return n - order.index(tag) - 1
            for pos in post:
                post[pos] = [f"s_waitcnt vmcnt({cnt(x[1], pos, True)})" if isinstance(x, tuple) and x[0] == "wait" else x for x in post[pos]]
            sh[(6, 0)] = [f"s_waitcnt vmcnt({cnt('Vb', (6, 0), False)}) lgkmcnt(0)", "s_barrier",
                          ("ds", rdk(2, 0), "K2"), ("ds", rdk(2, 1), "K2")] + sh[(6, 0)]
            sh[(6, 3)] = [("need", ["K2"])] + sh[(6, 3)]
            l = a.label("L_pub")
            pub = (o.pub_p, 0)
            sh[pub] = [f"s_waitcnt vmcnt({cnt('st', pub, False)})", "s_barrier",
                       f"s_cmp_lg_u32 s{S_WV}, 0", f"s_cbranch_scc1 {l}", "s_mov_b64 exec, 1",
                       f"buffer_store_byte v{V_IDX}, v0, {sr(S_D)}, s{S_C} offen sc1",
                       "s_mov_b64 exec, -1", f"{l}:"] + sh[pub]
            assert all(e[0] < pub for e in ev)
        if last:
            T = S_T
            sh[(0, 0)] += [f"s_lshl_b32 s{T+4}, s{S_QG}, 2"]
            for j in range(4):
                sh[(j, 1)] += [f"s_add_u32 s{T}, s{S_KS}, {1+j}"]
                sh[(j, 2)] += [f"s_and_b32 s{T}, s{T}, 3", f"s_add_u32 s{T}, s{T}, s{T+4}"]
                sh[(j, 3)] = [f"s_mul_i32 s{T}, s{T}, 12288", f"s_add_u32 s{T}, s{T}, {BUF0 + 4096 * (j % 3 if j < 3 else 0)}"] + sh[(j, 3)]
                post[(j, 3)] += [f"v_add_u32 v{V_XW+j}, s{T}, v{V_L16}"]
            for t in range(t0, 16):
                U, n = unit(t)[0], t
                for f in range(2):
                    sh[(t - 2, f)].append(("ds", rdk_abs(U, f, n), f"K{U}"))
                    vp = (t, f) if t > t0 else (t - 1, f)
                    sh[vp] += [("ds", rdv_abs(U, f, h, n), f"V{U}") for h in range(2)]
                sh[(t - 2, 3)].insert(0, ("need", [f"K{U}"]))
                if t < 14:
                    sh[(t + 1, 1)].insert(0, ("need", [f"V{U}"]))
            slots = [(p, s) for p in range(t0 - 2, 15) for s in (2, 3) if (t0 - 2, 2) <= (p, s) < o.xbar]
            items = [(j, g) for j in range(3) for g in range(4)]
            per = -(-len(items) // len(slots))
            k = 0
            for pos in slots:
                for _ in range(per):
                    if k < len(items) and pos >= (t0 - 2 + items[k][0], 2):
                        j, g = items[k]
                        sh[pos].append(f"ds_write_b128 v{V_XW+j}, {vr(VO+16*j+4*g,4)} offset:{1024*g}")
                        k += 1
            assert k == len(items)
            xr = lambda j: [("ds", f"ds_read_b128 {vr(VO+16*j+4*g,4)}, v{V_XW+3} offset:{4096*j+1024*g}", f"X{j}") for g in range(4)]
            post[(4, 3)] += [f"v_mov_b32 v{V_T}, {ABORT_WORD}"]
            sh[o.xbar] += [f"s_cmp_eq_u32 s{S_ABORT}, 0", "s_cbranch_scc1 L_noabort", f"ds_write_b32 v{V_T}, v{V_IDX}",
                           "L_noabort:", "s_waitcnt lgkmcnt(0)", "s_barrier",
                           ("ds", f"ds_read_b32 v{V_T2}, v{V_T}", "AB")] + xr(0) + xr(1)
            post[(14, 3)].append(("need", [f"V{unit(14)[0]}"]))
            post[(15, 1)] += [("need", ["X0"])] + xr(2)
            post[(15, 3)].append(("need", [f"V{unit(15)[0]}", "AB", "X1"]))

        stream = []
        for p in range(16):
            for s in range(4):
                if mf[(p, s)]:
                    stream.append(mf[(p, s)])
                stream += sh[(p, s)] + [ex(p, 4 * s + r) for r in range(4)] + post[(p, s)]
        out, q = resolve(stream, ["V0"] * 4)
        assert last or q == ["V4"] * len(q) and len(q) <= 4, q
        a(*out)
        self.last_unit = unit(15)[0]

    def prologue(self):
        a, o = self.a, self.o
        T = S_T
        a("s_cmp_ge_u32 s2, 256", "s_cbranch_scc1 L_end")
        self.stamp()
        a("s_load_dwordx8 s[4:11], s[0:1], 0", "s_load_dwordx4 s[12:15], s[0:1], 32", "s_load_dwordx2 s[16:17], s[0:1], 48")
        a(f"v_lshrrev_b32 v{V_T}, 6, v0", "v_and_b32 v0, 63, v0", f"v_readfirstlane_b32 s{S_WV}, v{V_T}",
          f"s_and_b32 s{S_HEAD}, s2, 7", f"s_lshl_b32 s{S_HEAD}, s{S_HEAD}, 1", f"s_lshr_b32 s{T}, s2, 7",
          f"s_add_u32 s{S_HEAD}, s{S_HEAD}, s{T}", f"s_bfe_u32 s{S_C}, s2, 0x40003",
          f"v_mul_u32_u24 v{V_ROW}, 28, v0", f"v_lshlrev_b32 v{V_L16}, 4, v0",
          f"s_mul_i32 s{T}, s{S_HEAD}, {HEAD_BYTES}", f"s_lshl_b32 s{T+1}, s{S_HEAD}, 18", f"s_lshl_b32 s{T+2}, s{S_HEAD}, 4",
          f"s_and_b32 s{T+3}, s{S_HEAD}, 14", f"s_lshl_b32 s{T+3}, s{T+3}, 1",
          f"s_mul_i32 s{S_WVV}, s{S_WV}, 1792", f"s_lshl_b32 s{S_WK}, s{S_WV}, 11",
          f"s_mul_i32 s{S_QOFF}, s{S_C}, 14336", f"s_add_u32 s{S_QOFF}, s{S_QOFF}, s{S_WVV}")
        for j, d in enumerate((S_GV, S_N0, S_N1)):
            a(f"s_cmp_le_u32 s{S_C}, {j}", f"s_cselect_b32 s{d}, {j+1}, {j}", f"s_mul_i32 s{d}, s{d}, 14336",
              f"s_add_u32 s{d}, s{d}, s{S_WVV}")
        a(f"s_lshl_b32 s{S_L0}, s{S_WV}, 12", f"s_add_u32 m0, s{S_L0}, {BUF0 + 2048}",
          f"s_and_b32 s{S_KS}, s{S_WV}, 3", f"s_lshr_b32 s{S_QG}, s{S_WV}, 2",
          f"s_mov_b32 s{S_M48}, -1", f"s_mov_b32 s{S_M48+1}, 0xffff")
        self.tr_addresses(V_KB + 1)
        a("s_waitcnt lgkmcnt(0)")
        self.stamp(True)
        self.srd(S_K, 6, T, HEAD_BYTES)
        a(ld4(VS, S_K, S_GV), ld3(VS, S_K, S_GV))
        self.srd(S_Q, 4, T, HEAD_BYTES)
        a(ld4(VS + 8, S_Q, S_QOFF), ld3(VS + 8, S_Q, S_QOFF), f"s_load_dword s{S_TB}, s[10:11], s{T+3}")
        self.srd(S_V, 8, T, HEAD_BYTES)
        a(*dv(S_GV, 0), *dv(S_GV, 1))
        later = [ld4(VR, S_K, S_QOFF), ld3(VR, S_K, S_QOFF), f"s_add_u32 m0, s{S_L0}, {BUF0 + 32768 + 2048}",
                 ld4(VR + 8, S_K, S_N0), ld3(VR + 8, S_K, S_N0), *dv(S_N0, 0), *dv(S_N0, 1)]
        self.stamp(True)
        a(*[f"v_mov_b32 v{VV+i}, 0" for i in range(4)])
        a(f"v_mov_b32 v{VK}, 0x3f80", f"v_mov_b32 v{VK+1}, 0", f"v_mov_b32 v{VK+2}, 0x3f80", f"v_mov_b32 v{VK+3}, 0")
        zero = lambda b: f"v_mfma_f32_32x32x16_bf16 {O(b)}, {vr(VV,4)}, {vr(VV,4)}, 0"
        a(zero(0),
          f"v_lshlrev_b32 v{V_T}, 11, v0", f"v_and_b32 v{V_T}, 0x18000, v{V_T}",
          f"v_and_b32 v{V_T2}, 0xf0, v{V_L16}", f"v_add3_u32 v{V_T}, v{V_T}, v{V_T2}, s{S_L0}",
          f"ds_write_b128 v{V_T}, {vr(VK,4)} offset:3840",
          zero(1),
          f"v_and_b32 v{V_T}, 1, v0", f"v_lshlrev_b32 v{V_T}, 9, v{V_T}", f"v_lshrrev_b32 v{V_FW1}, 1, v0",
          f"v_lshl_add_u32 v{V_T}, v{V_FW1}, 4, v{V_T}", f"v_add_u32 v{V_FW1}, s{S_L0}, v{V_T}",
          f"s_add_u32 s{T+5}, s{S_WK}, {QAREA}",
          f"v_add_u32 v{V_FW}, {BUF0}, v{V_FW1}", f"v_add_u32 v{V_T3}, s{T+5}, v{V_T}",
          zero(2),
          f"s_lshl_b32 s{T+5}, s{S_KS}, 12", f"s_add_u32 s{T+5}, s{T+5}, {BUF0}",
          f"v_add_u32 v{V_KA}, s{T+5}, v{V_L16}", f"v_add_u32 v{V_VA}, s{T+5}, v{V_KB+1}", f"v_add_u32 v{V_VA+1}, s{T+5}, v{V_KB+2}",
          f"v_mov_b32 v{V_KB}, v{V_L16}", f"v_mov_b32 v{V_IDX}, 0xdddddddd", f"v_mov_b32 v{VS+7}, 0x3f80",
          zero(3),
          f"v_and_b32 v{V_T}, 31, v0", f"v_mul_u32_u24 v{V_T}, 56, v{V_T}", f"v_lshrrev_b32 v{V_T2}, 5, v0",
          f"v_lshl_add_u32 v{V_OUT}, v{V_T2}, 5, v{V_T}", *[f"v_mov_b32 v{VR+8*i+7}, 0x3f80" for i in range(3)])
        self.srd(S_O, 12, T, HEAD_BYTES)
        self.srd(S_W, 16, T + 1, WSK_HEAD)
        self.srd(S_D, 14, T + 2, 16)
        a(f"s_lshl_b32 s{T+5}, s{S_QG}, 13", f"s_add_u32 s{T+5}, s{T+5}, {QAREA}")
        for j in range(4):
            a(f"s_add_u32 s{T+4}, s{S_KS}, {1+j}", f"s_and_b32 s{T+4}, s{T+4}, 3", f"s_lshl_b32 s{T+4}, s{T+4}, 11",
              f"s_add_u32 s{T+4}, s{T+4}, s{T+5}", f"v_add_u32 v{V_XW+j}, s{T+4}, v{V_L16}")
        a(f"s_lshl_b32 s{S_GK}, s{S_C}, 14", f"s_add_u32 s{S_GK}, s{S_GK}, s{S_WK}",
          f"s_max_u32 s{S_CM}, s{S_C}, 3", f"s_mov_b32 s{S_G}, 3",
          f"s_mov_b32 s{S_ABORT}, 0", f"s_mov_b32 s{S_CNT}, 6", f"s_cmp_lt_u32 s{S_WV}, 4", "s_cselect_b64 vcc, -1, 0")
        if o.later == 0:
            a(*later)
        self.stamp(True)
        a(f"s_waitcnt vmcnt({10 if o.later == 0 else 4})")
        self.stamp()
        self.normalize(VS, VS + 16)
        a(*wfrag(V_FW, VS, 0))
        if o.later == 1:
            a(*later)
        a("s_waitcnt lgkmcnt(0)",
          f"s_bitcmp1_b32 s{S_HEAD}, 0", f"s_cselect_b32 s{T+3}, 16, 0", f"s_lshr_b32 s{S_TB}, s{S_TB}, s{T+3}",
          f"s_and_b32 s{T+3}, s{S_TB}, 0x7fff", f"s_lshl_b32 s{S_TB}, s{S_TB}, 16",
          f"v_mov_b32 v{V_T}, {hex(LOG2E)}", f"v_mul_f32 v{V_T}, s{S_TB}, v{V_T}",
          f"s_cmp_gt_u32 s{T+3}, {hex(T_LIMIT)}", f"v_readfirstlane_b32 s{S_SC}, v{V_T}",
          f"v_mul_f32 v{V_T2}, -0.5, abs(v{V_T})", f"v_cvt_pk_bf16_f32 v{VS+15}, v{V_T2}, 0",
          "s_cbranch_scc1 L_slow", f"v_add_u32 v{V_T}, s{S_L0}, v{V_L16}")
        a(f"s_waitcnt vmcnt({8 if o.later < 2 else 2})")
        self.stamp(True)
        self.normalize(VS + 8, VS + 16, S_SC)
        a(*wfrag(V_T3, VS + 8, 0))
        if o.later == 2:
            a(*later)
        self.stamp(True)
        a("s_waitcnt vmcnt(6) lgkmcnt(0)", "s_barrier")
        self.stamp()
        a(rdk(0, 0), rdk(0, 1))
        for j in range(4):
            a(f"ds_read_b128 {Q(j,0)}, v{V_XW+j}", f"ds_read_b128 {Q(j,1)}, v{V_XW+j} offset:1024")
        a(rdv(0, 0, 0), rdv(0, 0, 1), rdv(0, 1, 0), rdv(0, 1, 1))
        if o.prio:
            a(*self.prio(1))
        a("s_waitcnt lgkmcnt(10)", qk(0, 0, 0, 0), qk(0, 1, 0, 0), "s_waitcnt lgkmcnt(4)", "s_nop 7", "s_nop 1")

    def epilogue(self):
        a = self.a
        U = self.last_unit
        a(pv(15, 0, U, 3), f"v_readfirstlane_b32 s{S_T}, v{V_T2}", pv(15, 1, U, 3),
          f"s_cmp_lg_u32 s{S_T}, 0", "s_cbranch_scc1 L_slow")
        a(*[f"v_pk_add_f32 {vr(VO+2*i,2)}, {vr(VO+2*i,2)}, {vr(VO+16+2*i,2)}" for i in range(8)])
        if self.o.ldsout:
            a(f"v_mov_b32 v{V_VA}, v{V_XW+3}", f"v_sub_u32 v{V_KA}, v{V_XW+3}, v{V_L16}", f"v_add_u32 v{V_KA}, v{V_KA}, v{V_OUT}")
        a("s_waitcnt lgkmcnt(0)")
        a(*[f"v_pk_add_f32 {vr(VO+2*i,2)}, {vr(VO+2*i,2)}, {vr(VO+32+2*i,2)}" for i in range(8)])
        self.finalize(VO + 48, VO)

    def slow(self):
        a = self.a
        KR, TT, M, MN, AL = VS + 16, VS + 40, VS + 48, VS + 49, VS + 50
        a("L_slow:", "s_setprio 0", "s_waitcnt vmcnt(0) lgkmcnt(0)", "s_barrier")
        a(ld4(KR, S_Q, S_QOFF), ld3(KR, S_Q, S_QOFF))
        a(f"s_lshl_b32 s{S_L0}, s{S_WV}, 12", f"v_add_u32 v{V_XW}, s{S_L0}, v{V_L16}",
          f"v_mov_b32 v{VK}, 0x3f80", f"v_mov_b32 v{VK+1}, 0", f"v_mov_b32 v{VK+2}, 0x3f80", f"v_mov_b32 v{VK+3}, 0",
          "s_mov_b64 exec, 0xffff", f"ds_write_b128 v{V_XW}, {vr(VK,4)} offset:3840", "s_mov_b64 exec, -1",
          f"v_mov_b32 v{KR+7}, 0", f"v_mov_b32 v{M}, 0xff800000", "s_nop 7")
        a(*[f"v_mov_b32 v{VO+r}, 0" for r in range(16)])
        a("s_waitcnt vmcnt(0)")
        self.normalize(KR, TT, S_SC)
        a(*wfrag(V_FW1, KR, 0), f"ds_read_b128 {Q(0,0)}, v{V_XW}", f"ds_read_b128 {Q(0,1)}, v{V_XW} offset:1024",
          "s_waitcnt lgkmcnt(0)")
        a(f"s_mov_b32 s{S_GV}, s{S_WVV}", f"s_mov_b32 s{S_CNT}, 16", "L_slow_group:")
        a(ld4(KR, S_K, S_GV), ld3(KR, S_K, S_GV), f"s_add_u32 m0, s{S_L0}, 2048", "s_nop 0", *dv(S_GV, 0), *dv(S_GV, 1),
          "s_waitcnt vmcnt(0)")
        self.normalize(KR, TT)
        a(*wfrag(V_FW1, KR, 0),
          f"v_mov_b32 v{V_KA}, v{V_L16}", f"v_mov_b32 v{V_VA}, v{V_KB+1}", f"v_mov_b32 v{V_VA+1}, v{V_KB+2}",
          f"s_mov_b32 s{S_G}, 8", "s_waitcnt lgkmcnt(0)", "s_barrier", "L_slow_tile:")
        a(rdk(0, 0), rdk(0, 1), rdv(0, 0, 0), rdv(0, 0, 1), rdv(0, 1, 0), rdv(0, 1, 1))
        a("s_waitcnt lgkmcnt(0)", qk(0, 0, 0, 0), qk(0, 1, 0, 0), "s_nop 15")
        a(f"v_max3_f32 v{MN}, v{VS}, v{VS+1}, v{M}")
        for r in range(2, 16, 2):
            a(f"v_max3_f32 v{MN}, v{VS+r}, v{VS+r+1}, v{MN}")
        a(f"v_mov_b32 v{AL}, v{MN}", "s_nop 1", f"v_permlane32_swap_b32 v{MN}, v{AL}", "s_nop 1",
          f"v_max_f32 v{MN}, v{MN}, v{AL}", f"v_sub_f32 v{AL}, v{M}, v{MN}", f"v_exp_f32 v{AL}, v{AL}", f"v_mov_b32 v{M}, v{MN}")
        for r in range(16):
            a(f"v_sub_f32 v{VS+r}, v{VS+r}, v{MN}", f"v_mul_f32 v{VO+r}, v{AL}, v{VO+r}")
        a(*[ex(0, r) for r in range(16)])
        a("s_nop 1", pv(0, 0, 0, 0), pv(0, 1, 0, 0),
          f"v_add_u32 v{V_KA}, 4096, v{V_KA}", f"v_add_u32 v{V_VA}, 4096, v{V_VA}", f"v_add_u32 v{V_VA+1}, 4096, v{V_VA+1}",
          "s_nop 15", f"s_sub_u32 s{S_G}, s{S_G}, 1", f"s_cmp_lg_u32 s{S_G}, 0", "s_cbranch_scc1 L_slow_tile")
        a("s_barrier", f"s_add_u32 s{S_GV}, s{S_GV}, 14336", f"s_sub_u32 s{S_CNT}, s{S_CNT}, 1", f"s_cmp_lg_u32 s{S_CNT}, 0",
          "s_cbranch_scc1 L_slow_group")
        if self.o.ldsout:
            a(f"v_mov_b32 v{V_VA}, v{V_XW}", f"v_add_u32 v{V_KA}, s{S_L0}, v{V_OUT}")
        self.finalize(VO)
        a("s_endpgm")

    def build(self):
        a, o = self.a, self.o
        n = "standalone__qk_norm__prompt_kernel"
        a('.amdgcn_target "amdgcn-amd-amdhsa--gfx950"', ".text", f".globl {n}", ".p2align 8", f".type {n},@function", f"{n}:")
        self.prologue()
        self.stage("first")
        self.stamp()
        a(".p2align 3", "L_loop:")
        self.stage("mid")
        a("s_cbranch_scc1 L_loop")
        self.stamp()
        self.stage("last")
        self.stamp()
        self.epilogue()
        self.stamp(True)
        if o.stamps:
            a("s_waitcnt vmcnt(0)")
        self.stamp()
        self.stamp_flush()
        a("L_end:", "s_endpgm")
        self.slow()
        kd = f""".section .rodata,"a"
.p2align 6
.amdhsa_kernel {n}
  .amdhsa_next_free_vgpr {NV}
  .amdhsa_next_free_sgpr {102 if o.stamps else 72}
  .amdhsa_accum_offset {(NV + 3) // 4 * 4}
  .amdhsa_group_segment_fixed_size 0
  .amdhsa_kernarg_size 56
  .amdhsa_user_sgpr_count 2
  .amdhsa_user_sgpr_kernarg_segment_ptr 1
  .amdhsa_system_sgpr_workgroup_id_x 1
.end_amdhsa_kernel
"""
        return HEADER + a.text() + kd


if __name__ == "__main__":
    tup = lambda s: tuple(map(int, s.split(","))) if s != "none" else None
    ap = argparse.ArgumentParser()
    ap.add_argument("out")
    ap.add_argument("--stamps", action="store_true")
    ap.add_argument("--fine", action="store_true")
    ap.add_argument("--prio", type=tup, default=(13, 10))
    ap.add_argument("--poll_p", type=int, default=4)
    ap.add_argument("--vm_pos", type=tup, default=(4, 5, 6))
    ap.add_argument("--later", type=int, default=1)
    ap.add_argument("--own_p", type=int, default=1)
    ap.add_argument("--b_p", type=int, default=4)
    ap.add_argument("--c_p", type=int, default=9)
    ap.add_argument("--pub_p", type=int, default=9)
    ap.add_argument("--xbar", type=tup, default=(14, 3))
    ap.add_argument("--outfl", default="")
    ap.add_argument("--tail", type=int, default=2)
    ap.add_argument("--ldsout", action="store_true")
    o = ap.parse_args()
    g = Gen(o)
    open(o.out, "w").write(g.build())
    print("stamps:", g.nst)
```

```python
import argparse

HEADER = """; Kernarg layout for this problem (56 bytes, ptrs only, base s[0:1]):
;   offset   0: d_in[0] q  shape=(1, 16, 4096, 28) dtype=bfloat16 strides=(3670016, 229376, 56, 2) contiguous=True
;   offset   8: d_in[1] k  shape=(1, 16, 4096, 28) dtype=bfloat16 strides=(3670016, 229376, 56, 2) contiguous=True
;   offset  16: d_in[2] v  shape=(1, 16, 4096, 28) dtype=bfloat16 strides=(3670016, 229376, 56, 2) contiguous=True
;   offset  24: d_in[3] t  shape=(16,) dtype=bfloat16 strides=(2,) contiguous=True
; @launch grid=(256,1,1) block=(512,1,1) lds=163840
;
; Fast path: subtracts the Cauchy-Schwarz bound |t|*log2(e) of the row maximum, taken only when |t| <= 20.75.
"""

HEAD_BYTES = 4096 * 56
WSK_HEAD = 128 * 2048
LOG2E = 0x3FB8AA3B
EPS = 0x358637BD
T_LIMIT = 0x41A6
BUF0, QAREA = 0x10000, 0x20000
ABORT_WORD, COUNT_WORD = 3852, 3860
SPIN_LIMIT = 1 << 16

V_LANE, V_T, V_ROW, V_L16, V_KA, V_OUT, V_T2, V_IDX = 0, 1, 2, 3, 4, 5, 6, 7
V_VA = 8
V_XW = 10
V_T3, V_T4 = 14, 15
VQ, VO, VS, VK, VV = 16, 48, 112, 176, 192
VR, VRT = 208, 232
V_FW = 240
V_FW1 = 241
V_KB = 242
NV = 245

S_Q, S_K, S_V, S_O, S_W, S_D = 20, 24, 28, 32, 36, 40
S_HEAD, S_C, S_WV, S_KS, S_QG = 44, 45, 46, 47, 48
S_G, S_GK, S_GV, S_L0, S_N0, S_CNT, S_WK, S_WVV = 49, 50, 51, 52, 53, 54, 55, 56
S_TB, S_SC, S_ABORT, S_QOFF, S_N1 = 57, 58, 59, 60, 61
S_CM, S_CH = 18, 19
S_M48 = 62
S_T = 64
S_ST = 72


class Asm:
    def __init__(self):
        self.lines = []
        self.n = 0

    def __call__(self, *ls):
        for l in ls:
            self.lines.append(l if l.endswith(":") or l.startswith(".") else "    " + l)

    def label(self, base):
        self.n += 1
        return f"{base}_{self.n}"

    def text(self):
        return "\n".join(self.lines) + "\n"


def vr(b, n): return f"v[{b}:{b+n-1}]"
def sr(b): return f"s[{b}:{b+3}]"
def S(t, o=0, n=16): return vr(VS + 16 * (t % 4) + o, n)
def K(u, f): return vr(VK + 8 * (u % 2) + 4 * f, 4)
def V(u, f): return vr(VV + 8 * (u % 2) + 4 * f, 4)
def Vh(u, f, h): return vr(VV + 8 * (u % 2) + 4 * f + 2 * h, 2)
def Q(b, f): return vr(VQ + 8 * b + 4 * f, 4)
def O(b): return vr(VO + 16 * b, 16)
def qk(t, f, u, b): return f"v_mfma_f32_32x32x16_bf16 {S(t)}, {K(u,f)}, {Q(b,f)}, {S(t) if f else 0}"
def pv(t, f, u, b): return f"v_smfmac_f32_32x32x32_bf16 {O(b)}, {V(u,f)}, {S(t,8*f,8)}, v{V_IDX}"
def rdk(u, f): return f"ds_read_b128 {K(u,f)}, v{V_KA} offset:{(u%4)*16384+1024*f}"
def rdv(u, f, h): return f"ds_read_b64_tr_b16 {Vh(u,f,h)}, v{V_VA+f} offset:{(u%4)*16384+224*h}"
def rdk_abs(u, f, n): return f"ds_read_b128 {K(u,f)}, v{V_KB} offset:{n*4096+1024*f}"
def rdv_abs(u, f, h, n): return f"ds_read_b64_tr_b16 {Vh(u,f,h)}, v{V_KB+1+f} offset:{n*4096+224*h}"


def resolve(stream, pending):
    out, q = [], list(pending)
    for x in stream:
        if isinstance(x, tuple) and x[0] == "need":
            idx = [i for i, t in enumerate(q) if t in x[1]]
            if idx:
                q = q[max(idx) + 1:]
                assert len(q) <= 15
                out.append(f"s_waitcnt lgkmcnt({len(q)})")
            continue
        text, tag = (x[1], x[2]) if isinstance(x, tuple) else (x, None)
        if text.startswith("ds_"):
            q.append(tag)
        elif "lgkmcnt(" in text:
            n = int(text.split("lgkmcnt(")[1].split(")")[0])
            q = q[len(q) - n:] if n and len(q) > n else ([] if n == 0 else q)
        out.append(text)
    return out, q
def ex(t, r): return f"v_exp_f32 v{VS+16*(t%4)+r}, v{VS+16*(t%4)+r}"
def ld4(R, srd, so): return f"buffer_load_dwordx4 {vr(R,4)}, v{V_ROW}, {sr(srd)}, s{so} offen"
def ld3(R, srd, so): return f"buffer_load_dwordx3 {vr(R+4,3)}, v{V_ROW}, {sr(srd)}, s{so} offen offset:16"
def dk(so, j): return [f"buffer_load_dwordx4 v{V_L16}, {sr(S_W)}, s{so} offen offset:{1024*j} sc1 lds"]
def dv(so, j):
    ins = f"buffer_load_dwordx4 v{V_L16}, {sr(S_V)}, s{so} offen offset:{1024*j} lds"
    return [f"s_mov_b64 exec, s[{S_M48}:{S_M48+1}]", ins, "s_mov_b64 exec, -1"] if j else [ins]
def wfrag(addr, R, off): return [f"ds_write_b128 v{addr}, {vr(R,4)} offset:{off}", f"ds_write_b128 v{addr}, {vr(R+4,4)} offset:{off+1024}"]
FLAGLOAD = f"buffer_load_dwordx4 {vr(V_XW,4)}, off, {sr(S_D)}, 0 sc1"


def norm_chunks(R, T, s_scale=None):
    un = lambda i, p: [f"v_lshlrev_b32 v{p}, 16, v{R+i}", f"v_and_b32 v{p+1}, 0xffff0000, v{R+i}"]
    c = [[f"v_dot2_f32_bf16 v{T}, v{R}, v{R}, 0", f"v_dot2_f32_bf16 v{T+1}, v{R+1}, v{R+1}, 0"]
         + [f"v_dot2_f32_bf16 v{T+i%2}, v{R+i}, v{R+i}, v{T+i%2}" for i in range(2, 7)]]
    c.append([f"v_add_f32 v{T}, v{T}, v{T+1}"] + un(0, T + 2)
             + [f"v_add_f32_dpp v{T}, v{T}, v{T} quad_perm:[1,0,3,2] row_mask:0xf bank_mask:0xf",
                f"v_sqrt_f32 v{T}, v{T}", un(1, T + 4)[0], f"v_add_f32 v{T}, {hex(EPS)}, v{T}",
                f"v_rcp_f32 v{T}, v{T}", un(1, T + 4)[1]])
    x = [f"v_mul_f32 v{T}, s{s_scale}, v{T}"] if s_scale is not None else []
    for i in range(7):
        p = T + 2 + 2 * (i % 3)
        if i + 2 < 7:
            x += un(i + 2, T + 2 + 2 * ((i + 2) % 3))
        x += [f"v_pk_mul_f32 {vr(p,2)}, {vr(p,2)}, {vr(T,2)} op_sel_hi:[1,0]", f"v_cvt_pk_bf16_f32 v{R+i}, v{p}, v{p+1}"]
        if i in (1, 3, 6):
            c.append(x)
            x = []
    return c


class Gen:
    def __init__(self, o):
        self.o = o
        self.a = Asm()
        self.nst = 0

    def stamp(self, fine=False):
        if self.o.stamps and self.o.fine == 2 and self.nst < 9:
            self.a(f"s_memtime s[{S_ST+2*self.nst}:{S_ST+2*self.nst+1}]")
            self.nst += 1
        elif self.o.stamps and (self.o.fine or not fine):
            j = self.nst
            self.a("s_memtime s[100:101]", "s_memrealtime s[98:99]", "s_waitcnt lgkmcnt(0)",
                   f"s_mov_b32 s{S_ST+2*j}, s100", f"s_mov_b32 s{S_ST+2*j+1}, s98")
            self.nst += 1

    def stamp_list(self):
        j = self.nst
        self.nst += 1
        return ["s_memtime s[100:101]", "s_memrealtime s[98:99]", "s_waitcnt lgkmcnt(0)",
                f"s_mov_b32 s{S_ST+2*j}, s100", f"s_mov_b32 s{S_ST+2*j+1}, s98"]

    def stamp_flush(self):
        if not self.o.stamps:
            return
        a, n = self.a, self.nst
        a("s_add_u32 s4, s16, 0x4000000", "s_addc_u32 s5, s17, 0", "s_mov_b32 s6, 0x100000", "s_mov_b32 s7, 0x00020000",
          "s_lshl_b32 s8, s2, 3", f"s_add_u32 s8, s8, s{S_WV}", f"s_mul_i32 s8, s8, {8*n}", "v_mov_b32 v1, 0", "s_mov_b64 exec, 1")
        for j in range(n):
            a(f"v_mov_b32 v14, s{S_ST+2*j}", f"v_mov_b32 v15, s{S_ST+2*j+1}",
              f"buffer_store_dwordx2 v[14:15], v1, s[4:7], s8 offen offset:{8*j}", "s_nop 1")

    def srd(self, d, base, s_off, nbytes):
        self.a(f"s_add_u32 s{d}, s{base}, s{s_off}", f"s_addc_u32 s{d+1}, s{base+1}, 0",
               f"s_mov_b32 s{d+2}, {nbytes}", f"s_mov_b32 s{d+3}, 0x00020000")

    def normalize(self, *job):
        for k, c in enumerate(norm_chunks(*job)):
            self.a(*c)
            if k == 0:
                self.a("s_nop 2")

    def tr_addresses(self, dst):
        a, t, u = self.a, V_T, V_T2
        a(f"v_lshrrev_b32 v{t}, 5, v0", f"v_mul_u32_u24 v{dst}, 448, v{t}",
          f"v_bfe_u32 v{t}, v0, 2, 2", f"v_mad_u32_u24 v{dst}, v{t}, 56, v{dst}",
          f"v_and_b32 v{t}, 1, v0", f"v_lshl_add_u32 v{dst}, v{t}, 5, v{dst}",
          f"v_bfe_u32 v{t}, v0, 4, 1", f"v_lshl_add_u32 v{dst}, v{t}, 4, v{dst}",
          f"v_bfe_u32 v{t}, v0, 1, 1", f"v_lshl_add_u32 v{dst}, v{t}, 3, v{dst}",
          f"v_and_b32 v{t}, 19, v0", f"v_cmp_eq_u32 vcc, 19, v{t}",
          f"v_add_u32 v{dst+1}, {2048+896}, v{dst}", f"v_add_u32 v{dst}, 2048, v{dst}", f"v_mov_b32 v{u}, 3840",
          f"v_cndmask_b32 v{dst}, v{dst}, v{u}, vcc", f"v_cndmask_b32 v{dst+1}, v{dst+1}, v{u}, vcc")

    def finalize(self, R, X=None):
        a, fl = self.a, self.o.outfl
        add = lambda i: [f"v_pk_add_f32 {vr(R+2*i,2)}, {vr(R+2*i,2)}, {vr(X+2*i,2)}"] if X is not None else ["s_nop 0"]
        a(*add(6), f"v_mov_b32 v{V_T3}, v{R+12}", f"v_mov_b32 v{V_T4}, v{R+12}", *add(0), *add(1),
          f"v_permlane32_swap_b32 v{V_T3}, v{V_T4}", *add(2), f"v_rcp_f32 v{V_T4}, v{V_T4}", *add(3))
        for i in range(8):
            if X is not None and i in (4, 5, 7):
                a(*add(i))
            a(f"v_pk_mul_f32 {vr(R+2*i,2)}, {vr(R+2*i,2)}, {vr(V_T3,2)} op_sel:[0,1] op_sel_hi:[1,1]",
              f"v_cvt_pk_bf16_f32 v{R+i}, v{R+2*i}, v{R+2*i+1}")
            if self.o.ldsout:
                if i in (1, 3, 5):
                    a(f"ds_write_b64 v{V_KA}, {vr(R+i-1,2)} offset:{4*(i-1)}")
                continue
            if i == 3:
                a(f"buffer_store_dwordx4 {vr(R,4)}, v{V_OUT}, {sr(S_O)}, s{S_QOFF} offen {fl}")
            if i == 5:
                a(f"buffer_store_dwordx2 {vr(R+4,2)}, v{V_OUT}, {sr(S_O)}, s{S_QOFF} offen offset:16 {fl}")
        if self.o.ldsout:
            a("s_mov_b32 exec_hi, 0", f"ds_write_b64 v{V_KA}, {vr(R+6,2)} offset:24", "s_mov_b32 exec_hi, -1",
              f"ds_read_b128 {vr(R+8,4)}, v{V_VA}", f"ds_read_b128 {vr(R+12,4)}, v{V_VA} offset:1024", "s_waitcnt lgkmcnt(1)",
              f"buffer_store_dwordx4 {vr(R+8,4)}, v{V_L16}, {sr(S_O)}, s{S_QOFF} offen {fl}",
              f"s_mov_b64 exec, s[{S_M48}:{S_M48+1}]", "s_waitcnt lgkmcnt(0)",
              f"buffer_store_dwordx4 {vr(R+12,4)}, v{V_L16}, {sr(S_O)}, s{S_QOFF} offen offset:1024 {fl}",
              "s_mov_b64 exec, -1")
            return
        a("s_mov_b32 exec_hi, 0",
          f"buffer_store_dwordx2 {vr(R+6,2)}, v{V_OUT}, {sr(S_O)}, s{S_QOFF} offen offset:24 {fl}",
          "s_mov_b32 exec_hi, -1")

    def prio(self, n, role="y"):
        if role == "b":
            return [f"s_setprio {n}"]
        l = self.a.label("L_prio")
        return [f"s_cbranch_{'vccnz' if role == 'y' else 'vccz'} {l}", f"s_setprio {n}", f"{l}:"]

    def poll_block(self):
        return [f"s_cmp_lg_u32 s{S_CNT}, 6", "s_cbranch_scc1 L_ready", f"s_mov_b32 s{S_T}, 0",
                "L_poll:", "s_waitcnt vmcnt(0)",
                f"v_and_b32 v{V_XW}, v{V_XW}, v{V_XW+1}", f"v_and_b32 v{V_XW+2}, v{V_XW+2}, v{V_XW+3}",
                f"v_and_b32 v{V_XW}, v{V_XW}, v{V_XW+2}", f"s_add_u32 s{S_T}, s{S_T}, 1",
                f"v_readfirstlane_b32 s{S_T+1}, v{V_XW}",
                f"s_cmp_eq_u32 s{S_T+1}, 0xdddddddd", "s_cbranch_scc1 L_ready",
                FLAGLOAD, f"s_cmp_lt_u32 s{S_T}, {SPIN_LIMIT}", "s_cbranch_scc1 L_poll",
                "s_waitcnt vmcnt(0)", f"s_mov_b32 s{S_ABORT}, 1", "L_ready:"]

    def stage(self, kind):
        a, o = self.a, self.o
        sh = {(p, s): [] for p in range(16) for s in range(4)}
        post = {(p, s): [] for p in range(16) for s in range(4)}
        last, first, mid = kind == "last", kind == "first", kind == "mid"
        t0 = 16 - 4 * o.tail if last else 99
        unit = lambda t: (t // 4, t % 4) if t < t0 else (t0 // 4 + t - t0, 3)
        mf = {}
        for p in range(16):
            for f in range(2):
                mf[(p, f)] = qk(p + 1, f, *unit(p + 1))
                mf[(p, 2 + f)] = pv(p - 1, f, *unit(p - 1))
        if first:
            mf[(0, 2)] = mf[(0, 3)] = None
        if last:
            mf[(15, 0)], mf[(15, 1)], mf[(15, 2)], mf[(15, 3)] = mf[(15, 2)], mf[(15, 3)], None, None
        nvm = 0

        if not last:
            sh[(12, 2)] += ["s_waitcnt vmcnt(0) lgkmcnt(0)", "s_barrier", f"v_xor_b32 v{V_KA}, 0x10000, v{V_KA}"]
            post[(13, 2)] += [f"v_xor_b32 v{V_VA}, 0x10000, v{V_VA}", f"v_xor_b32 v{V_VA+1}, 0x10000, v{V_VA+1}"]
            sh[(13, 3)] += [f"s_xor_b32 s{S_L0}, s{S_L0}, 0x10000"]
        if mid:
            sh[(15, 3)] += [f"s_sub_u32 s{S_CNT}, s{S_CNT}, 1", f"s_cmp_lg_u32 s{S_CNT}, 0"]
            l = a.label("L_fl")
            sh[(o.poll_p - 2, 2)] += [f"s_cmp_lg_u32 s{S_CNT}, 6", f"s_cbranch_scc1 {l}", FLAGLOAD, f"{l}:"]
            sh[(o.poll_p, 0)] += self.poll_block()
            for g in range(4):
                half, part, p = g // 2, g % 2, o.poll_p + g
                sh[(p, 0)] += [f"s_add_u32 m0, s{S_L0}, {half*32768 + part*2048}"]
                if part == 0:
                    sh[(p - 2, 3)] += [f"s_cmp_ge_u32 s{S_G}, s{S_CM}", f"s_addc_u32 s{S_CH}, s{S_G}, 0"]
                    sh[(p - 1, 0)] += [f"s_add_u32 s{S_G}, s{S_G}, 1"]
                    sh[(p - 1, 3)] += [f"s_lshl_b32 s{S_GK}, s{S_CH}, 14", f"s_add_u32 s{S_GK}, s{S_GK}, s{S_WK}"]
                else:
                    sh[(p - 1, 3)] += [f"s_mul_i32 s{S_GV}, s{S_CH}, 14336", f"s_add_u32 s{S_GV}, s{S_GV}, s{S_WVV}"]
                for j in range(2):
                    sh[(p, 1 + j)] += dv(S_GV, j) if part else dk(S_GK, j)
        for role, p, n in (o.p0 if first else o.p7 if last else o.pm):
            if p >= 0:
                sh[(p, 1)] += self.prio(n, role)

        for p in range(16):
            u, jj = p // 4 + 1, p % 4
            if jj == 1 and 4 * (u - 1) < t0:
                sh[(p, 1)].append(("need", [f"V{u-1}"]))
            late = first and o.kbin and u == 2
            if 4 * u >= t0 or (late and jj < 2):
                continue
            if jj == 2 and not late:
                sh[(p, 2)].append(("need", [f"K{u}"]))
            if jj < 2:
                sh[(p, 3)].append(("ds", rdk(u, jj), f"K{u}"))
            else:
                sh[(p, 2)].append(("ds", rdv(u, jj - 2, 0), f"V{u}"))
                sh[(p, 3)].append(("ds", rdv(u, jj - 2, 1), f"V{u}"))
        if first:
            ev = []
            def spread(R, p0, addr, off, tag):
                c = norm_chunks(R, VRT)
                slots = [(p0 + k // 4, k % 4) for k in range(8)]
                pos = [slots[0], slots[1], slots[3], slots[4], slots[6]]
                post[pos[0]].append(("wait", tag))
                for k in range(5):
                    post[pos[k]] += c[k]
                sh[slots[7]] += wfrag(addr, R, off)
                return slots[7]
            w = spread(VR, o.own_p, V_FW1, 32768, "Kown")
            if o.directst:
                va, st0, st1 = V_T4, (w[0], 1), (w[0], 3)
            else:
                sh[w] += [("ds", f"ds_read_b128 {vr(VR,4)}, v{V_T} offset:32768", "rb"), ("ds", f"ds_read_b128 {vr(VR+4,4)}, v{V_T} offset:33792", "rb")]
                va, st0, st1 = V_L16, (w[0] + 1, o.st_s), (w[0] + 1, o.st_s + 1)
                sh[st0].append(("need", ["rb"]))
            ev.append((st0, [f"buffer_store_dwordx4 {vr(VR,4)}, v{va}, {sr(S_W)}, s{S_GK} offen {o.stfl}"], "st0"))
            ev.append((st1, [f"buffer_store_dwordx4 {vr(VR+4,4)}, v{va}, {sr(S_W)}, s{S_GK} offen offset:1024 {o.stfl}"], "st"))
            if o.kbin:
                spread(VR + 8, o.b_p, V_FW, 32768, "Kb")
            spread(VR + 16, o.c_p, V_FW1, 0, "Kc")
            assert o.kbin and o.directst
            p = o.kb_pos
            ev += [((p[0], 1), [ld4(VR + 8, S_K, S_N0)], "x"), ((p[0], 2), [ld3(VR + 8, S_K, S_N0)], "Kb"),
                   ((p[1], 0), [f"s_add_u32 m0, s{S_L0}, {BUF0 + 32768 + 2048}", "s_nop 0"] + dv(S_N0, 0), "x"),
                   ((p[1], 2), dv(S_N0, 1), "Vb")]
            p = o.vm_pos
            ev += [((p[0], 1), [ld4(VR + 16, S_K, S_N1)], "x"), ((p[0], 2), [ld3(VR + 16, S_K, S_N1)], "Kc"),
                   ((p[1], 1), dv(S_N1, 0), "x"), ((p[1], 2), dv(S_N1, 1), "x"),
                   ((p[2], 1), dv(S_QOFF, 0), "x"), ((p[2], 2), dv(S_QOFF, 1), "x")]
            sh[(p[1], 0)] += [f"s_add_u32 m0, s{S_L0}, 2048"]
            sh[(p[2], 0)] += [f"s_add_u32 m0, s{S_L0}, {32768 + 2048}"]
            ev.sort(key=lambda e: e[0])
            assert len({e[0] for e in ev}) == len(ev)
            for pos, ins, _ in ev:
                sh[pos] += ins
            order = ["x"] * 7 + ["Kown"] + [e[2] for e in ev]
            def cnt(tag, pos, incl):
                n = 8 + sum(1 for e in ev if e[0] < pos or (incl and e[0] == pos))
                assert order.index(tag) < n
                return n - order.index(tag) - 1
            for pos in post:
                post[pos] = [f"s_waitcnt vmcnt({cnt(x[1], pos, True)})" if isinstance(x, tuple) and x[0] == "wait" else x for x in post[pos]]
            if o.kbin:
                sh[(6, 0)] = [f"s_waitcnt vmcnt({cnt('Vb', (6, 0), False)}) lgkmcnt(0)", "s_barrier",
                              ("ds", rdk(2, 0), "K2"), ("ds", rdk(2, 1), "K2")] + sh[(6, 0)]
                sh[(6, 3)] = [("need", ["K2"])] + sh[(6, 3)]
            l = a.label("L_pub")
            if o.pubbar:
                pub = (o.pub_p, 0)
                sh[pub] = [f"s_waitcnt vmcnt({cnt('st', pub, False)})", "s_barrier",
                           f"s_cmp_lg_u32 s{S_WV}, 0", f"s_cbranch_scc1 {l}", "s_mov_b64 exec, 1",
                           f"buffer_store_byte v{V_IDX}, v0, {sr(S_D)}, s{S_C} offen sc1",
                           "s_mov_b64 exec, -1", f"{l}:"] + sh[pub]
                assert all(e[0] < pub for e in ev)
        if first and not o.pubbar:
            pub = (o.pub_p, 2)
            post[(o.pub_p, 1)] += [f"v_mov_b32 v{V_T}, {COUNT_WORD}", f"v_mov_b32 v{V_T2}, 1"]
            sh[pub] = [f"s_waitcnt vmcnt({cnt('st', pub, False)})", "s_mov_b64 exec, 1",
                       ("ds", f"ds_add_rtn_u32 v{V_T2}, v{V_T}, v{V_T2}", "cnt"), "s_mov_b64 exec, -1"] + sh[pub]
            post[(o.pub_p + 1, 0)] += [("need", ["cnt"]), f"v_readfirstlane_b32 s{S_T}, v{V_T2}"]
            sh[(o.pub_p + 1, 2)] = [f"s_cmp_lg_u32 s{S_T}, 7", f"s_cbranch_scc1 {l}", "s_mov_b64 exec, 1",
                                    f"buffer_store_byte v{V_IDX}, v0, {sr(S_D)}, s{S_C} offen sc1",
                                    "s_mov_b64 exec, -1", f"{l}:"] + sh[(o.pub_p + 1, 2)]
            assert all(e[0] < pub for e in ev) and o.pub_p > o.own_p + 2
            if o.pub_p >= 12:
                assert [e[2] for e in ev[-2:]] == ["st0", "st"] and sh[(12, 2)][0 if o.pub_p > 12 else 4].startswith("s_waitcnt vmcnt(0)")
                sh[(12, 2)][0 if o.pub_p > 12 else 4] = "s_waitcnt vmcnt(2) lgkmcnt(0)"
        if last:
            T = S_T
            sh[(0, 0)] += [f"s_lshl_b32 s{T+4}, s{S_QG}, 2"]
            for j in range(4):
                sh[(j, 1)] += [f"s_add_u32 s{T}, s{S_KS}, {1+j}"]
                sh[(j, 2)] += [f"s_and_b32 s{T}, s{T}, 3", f"s_add_u32 s{T}, s{T}, s{T+4}"]
                sh[(j, 3)] = [f"s_mul_i32 s{T}, s{T}, 12288", f"s_add_u32 s{T}, s{T}, {BUF0 + 4096 * (j % 3 if j < 3 else 0)}"] + sh[(j, 3)]
                post[(j, 3)] += [f"v_add_u32 v{V_XW+j}, s{T}, v{V_L16}"]
            for t in range(t0, 16):
                U, n = unit(t)[0], t
                for f in range(2):
                    sh[(t - 2, f)].append(("ds", rdk_abs(U, f, n), f"K{U}"))
                    vp = (t, f) if t > t0 else (t - 1, f)
                    sh[vp] += [("ds", rdv_abs(U, f, h, n), f"V{U}") for h in range(2)]
                sh[(t - 2, 3)].insert(0, ("need", [f"K{U}"]))
                if t < 14:
                    sh[(t + 1, 1)].insert(0, ("need", [f"V{U}"]))
            slots = [(p, s) for p in range(t0 - 2, 15) for s in (2, 3) if (t0 - 2, 2) <= (p, s) < o.xbar]
            items = [(j, g) for j in range(3) for g in range(4)]
            per = -(-len(items) // len(slots))
            k = 0
            for pos in slots:
                for _ in range(per):
                    if k < len(items) and pos >= (t0 - 2 + items[k][0], 2):
                        j, g = items[k]
                        sh[pos].append(f"ds_write_b128 v{V_XW+j}, {vr(VO+16*j+4*g,4)} offset:{1024*g}")
                        k += 1
            assert k == len(items)
            xr = lambda j: [("ds", f"ds_read_b128 {vr(VO+16*j+4*g,4)}, v{V_XW+3} offset:{4096*j+1024*g}", f"X{j}") for g in range(4)]
            post[(4, 3)] += [f"v_mov_b32 v{V_T}, {ABORT_WORD}"]
            sh[o.xbar] += [f"s_cmp_eq_u32 s{S_ABORT}, 0", "s_cbranch_scc1 L_noabort", f"ds_write_b32 v{V_T}, v{V_IDX}",
                           "L_noabort:", "s_waitcnt lgkmcnt(0)", "s_barrier",
                           ("ds", f"ds_read_b32 v{V_T2}, v{V_T}", "AB")] + xr(0) + xr(1)
            post[(14, 3)].append(("need", [f"V{unit(14)[0]}"]))
            post[(15, 1)] += [("need", ["X0"])] + xr(2)
            post[(15, 3)].append(("need", [f"V{unit(15)[0]}", "AB", "X1"]))

        stream = []
        for p in range(16):
            for s in range(4):
                if mf[(p, s)]:
                    stream.append(mf[(p, s)])
                stream += sh[(p, s)] + [ex(p, 4 * s + r) for r in range(4)] + post[(p, s)]
                if o.s0 and kind == o.s0[0] and s == 3 and p in o.s0[1]:
                    stream += self.stamp_list()
        out, q = resolve(stream, ["V0"] * 4)
        assert last or q == ["V4"] * len(q) and len(q) <= 4, q
        a(*out)
        self.last_unit = unit(15)[0]

    def deferred_scalars(self):
        T = S_T
        base = lambda d, b, off: [[f"s_add_u32 s{d}, s{b}, s{off}", f"s_addc_u32 s{d+1}, s{b+1}, 0"]]
        return (base(S_W, 16, T + 1) + [[f"s_lshl_b32 s{S_GK}, s{S_C}, 14", f"s_add_u32 s{S_GK}, s{S_GK}, s{S_WK}"]]
                + base(S_D, 14, T + 2) + base(S_O, 12, T)
                + [[f"s_max_u32 s{S_CM}, s{S_C}, 3", f"s_mov_b32 s{S_G}, 3"], [f"s_mov_b32 s{S_ABORT}, 0", f"s_mov_b32 s{S_CNT}, 6"]])

    def prologue(self):
        a, o = self.a, self.o
        T = S_T
        a("s_cmp_ge_u32 s2, 256", "s_cbranch_scc1 L_end")
        self.stamp()
        a("s_load_dwordx8 s[4:11], s[0:1], 0", "s_load_dwordx4 s[12:15], s[0:1], 32", "s_load_dwordx2 s[16:17], s[0:1], 48")
        a(f"v_lshrrev_b32 v{V_T}, 6, v0", "v_and_b32 v0, 63, v0", f"v_readfirstlane_b32 s{S_WV}, v{V_T}",
          f"s_and_b32 s{S_HEAD}, s2, 7", f"s_lshl_b32 s{S_HEAD}, s{S_HEAD}, 1", f"s_lshr_b32 s{T}, s2, 7",
          f"s_add_u32 s{S_HEAD}, s{S_HEAD}, s{T}", f"s_bfe_u32 s{S_C}, s2, 0x40003",
          f"v_mul_u32_u24 v{V_ROW}, 28, v0", f"v_lshlrev_b32 v{V_L16}, 4, v0",
          f"s_mul_i32 s{T}, s{S_HEAD}, {HEAD_BYTES}", f"s_mul_i32 s{S_WVV}, s{S_WV}, 1792",
          f"s_mul_i32 s{S_QOFF}, s{S_C}, 14336", f"s_add_u32 s{S_QOFF}, s{S_QOFF}, s{S_WVV}",
          f"s_cmp_eq_u32 s{S_C}, 0", f"s_cselect_b32 s{S_GV}, 14336, 0", f"s_add_u32 s{S_GV}, s{S_GV}, s{S_WVV}",
          f"s_and_b32 s{T+3}, s{S_HEAD}, 14", f"s_lshl_b32 s{T+3}, s{T+3}, 1")
        for d in (S_K, S_Q, S_V):
            a(f"s_mov_b32 s{d+2}, {HEAD_BYTES}", f"s_mov_b32 s{d+3}, 0x00020000")
        a(f"s_lshl_b32 s{S_L0}, s{S_WV}, 12", f"s_lshl_b32 s{S_WK}, s{S_WV}, 11",
          f"s_and_b32 s{S_KS}, s{S_WV}, 3", f"s_lshr_b32 s{S_QG}, s{S_WV}, 2")
        zero = lambda b: f"v_mfma_f32_32x32x16_bf16 {O(b)}, {vr(VV,4)}, {vr(VV,4)}, 0"
        rec = Asm()
        self.a, keep = rec, self.a
        rec(*[f"v_mov_b32 v{VV+i}, 0" for i in range(4)])
        rec(f"v_mov_b32 v{VK}, 0x3f80", f"v_mov_b32 v{VK+1}, 0", f"v_mov_b32 v{VK+2}, 0x3f80", f"v_mov_b32 v{VK+3}, 0",
            zero(0), f"s_add_u32 m0, s{S_L0}, {BUF0 + 2048}",
            f"v_lshlrev_b32 v{V_T}, 11, v0", f"v_and_b32 v{V_T}, 0x18000, v{V_T}",
            f"v_and_b32 v{V_T2}, 0xf0, v{V_L16}", f"v_add3_u32 v{V_T}, v{V_T}, v{V_T2}, s{S_L0}",
            f"ds_write_b128 v{V_T}, {vr(VK,4)} offset:3840",
            zero(1), f"s_add_u32 s{T+5}, s{S_WK}, {QAREA}",
            f"v_and_b32 v{V_T}, 1, v0", f"v_lshlrev_b32 v{V_T}, 9, v{V_T}", f"v_lshrrev_b32 v{V_FW1}, 1, v0",
            f"v_lshl_add_u32 v{V_T4}, v{V_FW1}, 4, v{V_T}", f"v_add_u32 v{V_FW1}, s{S_L0}, v{V_T4}",
            f"v_add_u32 v{V_FW}, {BUF0}, v{V_FW1}", f"v_add_u32 v{V_T3}, s{T+5}, v{V_T4}",
            zero(2), f"s_mov_b32 s{S_M48}, -1")
        self.tr_addresses(V_KB + 1)
        rec(zero(3), f"s_mov_b32 s{S_M48+1}, 0xffff",
            f"s_lshl_b32 s{T+5}, s{S_KS}, 12", f"s_add_u32 s{T+5}, s{T+5}, {BUF0}",
            f"v_add_u32 v{V_KA}, s{T+5}, v{V_L16}", f"v_add_u32 v{V_VA}, s{T+5}, v{V_KB+1}", f"v_add_u32 v{V_VA+1}, s{T+5}, v{V_KB+2}",
            f"v_mov_b32 v{V_KB}, v{V_L16}", f"v_mov_b32 v{V_IDX}, 0xdddddddd", f"v_mov_b32 v{VS+7}, 0x3f80",
            f"v_and_b32 v{V_T}, 31, v0", f"v_mul_u32_u24 v{V_T}, 56, v{V_T}", f"v_lshrrev_b32 v{V_T2}, 5, v0",
            f"v_lshl_add_u32 v{V_OUT}, v{V_T2}, 5, v{V_T}", *[f"v_mov_b32 v{VR+8*i+7}, 0x3f80" for i in range(3)])
        rec(f"s_lshl_b32 s{T+5}, s{S_QG}, 13", f"s_add_u32 s{T+5}, s{T+5}, {QAREA}", f"s_lshl_b32 s{T+4}, s{S_KS}, 11",
            f"v_add_u32 v{V_T}, s{T+4}, v{V_L16}")
        for j in range(4):
            rec(f"v_add_u32 v{V_T2}, {2048*(1+j)}, v{V_T}", f"v_and_b32 v{V_T2}, 0x1fff, v{V_T2}", f"v_add_u32 v{V_XW+j}, s{T+5}, v{V_T2}")
        for j, d in ((1, S_N0), (2, S_N1)):
            rec(f"s_cmp_le_u32 s{S_C}, {j}", f"s_cselect_b32 s{d}, {j+1}, {j}", f"s_mul_i32 s{d}, s{d}, 14336",
                f"s_add_u32 s{d}, s{d}, s{S_WVV}")
        rec(f"s_lshl_b32 s{T+1}, s{S_HEAD}, 18", f"s_lshl_b32 s{T+2}, s{S_HEAD}, 4",
            f"s_mov_b32 s{S_W+2}, {WSK_HEAD}", f"s_mov_b32 s{S_D+2}, 16", f"s_mov_b32 s{S_O+2}, {HEAD_BYTES}",
            *[f"s_mov_b32 s{d+3}, 0x00020000" for d in (S_W, S_D, S_O)],
            f"s_cmp_lt_u32 s{S_WV}, 4", "s_cselect_b64 vcc, -1, 0")
        self.a = keep
        setup = [l.strip() for l in rec.lines]
        assert o.split >= len(setup) or not setup[o.split].startswith(("s_cselect", "v_cndmask"))
        a(*setup[:o.split])
        a("s_waitcnt lgkmcnt(0)")
        self.stamp(True)
        base = lambda d, b: [f"s_add_u32 s{d}, s{b}, s{T}", f"s_addc_u32 s{d+1}, s{b+1}, 0"]
        va = [*dv(S_GV, 0), *dv(S_GV, 1)]
        q2 = o.split + o.qgap
        assert q2 >= len(setup) or not setup[q2].startswith(("s_cselect", "v_cndmask"))
        a(*base(S_K, 6), ld4(VS, S_K, S_GV), ld3(VS, S_K, S_GV), f"s_load_dword s{S_TB}, s[10:11], s{T+3}", *setup[o.split:q2],
          *base(S_Q, 4), ld4(VS + 8, S_Q, S_QOFF), ld3(VS + 8, S_Q, S_QOFF), *base(S_V, 8))
        kown = [ld4(VR, S_K, S_QOFF), ld3(VR, S_K, S_QOFF)]
        assert o.vpos == 1 or o.kownpos == 2
        self.stamp(True)
        a(*setup[q2:])
        if o.yprio:
            a(*self.prio(1))
        if o.vpos == 1:
            a(*va)
        if o.kownpos == 1:
            a(*kown)
        self.stamp(True)
        a(f"s_waitcnt vmcnt({6 if o.kownpos == 1 else 4 if o.vpos == 1 else 2})")
        self.stamp()
        self.normalize(VS, VS + 16)
        a(*wfrag(V_FW, VS, 0))
        self.stamp(True)
        if o.vpos == 2:
            a(*va)
        if o.kownpos == 2:
            a(*kown)
        a("s_waitcnt lgkmcnt(0)",
          f"s_bitcmp1_b32 s{S_HEAD}, 0", f"s_cselect_b32 s{T+3}, 16, 0", f"s_lshr_b32 s{S_TB}, s{S_TB}, s{T+3}",
          f"s_and_b32 s{T+3}, s{S_TB}, 0x7fff", f"s_lshl_b32 s{S_TB}, s{S_TB}, 16",
          f"v_mov_b32 v{V_T}, {hex(LOG2E)}", f"v_mul_f32 v{V_T}, s{S_TB}, v{V_T}",
          f"s_cmp_gt_u32 s{T+3}, {hex(T_LIMIT)}", f"v_readfirstlane_b32 s{S_SC}, v{V_T}",
          f"v_mul_f32 v{V_T2}, -0.5, abs(v{V_T})", f"v_cvt_pk_bf16_f32 v{VS+15}, v{V_T2}, 0",
          "s_cbranch_scc1 L_slow0")
        self.stamp(True)
        a("s_waitcnt vmcnt(4)")
        self.stamp(True)
        self.normalize(VS + 8, VS + 16, S_SC)
        a(*wfrag(V_T3, VS + 8, 0))
        self.stamp(True)
        a("s_waitcnt vmcnt(2) lgkmcnt(0)", "s_barrier")
        self.stamp()
        a(rdk(0, 0), rdk(0, 1))
        for j in range(4):
            a(f"ds_read_b128 {Q(j,0)}, v{V_XW+j}", f"ds_read_b128 {Q(j,1)}, v{V_XW+j} offset:1024")
        a(rdv(0, 0, 0), rdv(0, 0, 1), rdv(0, 1, 0), rdv(0, 1, 1))
        for role, p, n in o.p0:
            if p < 0:
                a(*self.prio(n, role))
        d = self.deferred_scalars()
        a(*d[0], *d[1], "s_waitcnt lgkmcnt(10)", qk(0, 0, 0, 0), qk(0, 1, 0, 0), *d[2], *d[3], *d[4], *d[5],
          "s_waitcnt lgkmcnt(4)", "s_nop 1")

    def epilogue(self):
        a = self.a
        U = self.last_unit
        a(pv(15, 0, U, 3), f"v_readfirstlane_b32 s{S_T}, v{V_T2}", pv(15, 1, U, 3),
          f"s_cmp_lg_u32 s{S_T}, 0", "s_cbranch_scc1 L_slow")
        a(*[f"v_pk_add_f32 {vr(VO+2*i,2)}, {vr(VO+2*i,2)}, {vr(VO+16+2*i,2)}" for i in range(8)])
        if self.o.ldsout:
            a(f"v_mov_b32 v{V_VA}, v{V_XW+3}", f"v_sub_u32 v{V_KA}, v{V_XW+3}, v{V_L16}", f"v_add_u32 v{V_KA}, v{V_KA}, v{V_OUT}")
        a("s_waitcnt lgkmcnt(0)")
        a(*[f"v_pk_add_f32 {vr(VO+2*i,2)}, {vr(VO+2*i,2)}, {vr(VO+32+2*i,2)}" for i in range(8)])
        self.finalize(VO + 48, VO)

    def slow(self):
        a = self.a
        KR, TT, M, MN, AL = VS + 16, VS + 40, VS + 48, VS + 49, VS + 50
        a("L_slow0:", *self.deferred_scalars()[3])
        a("L_slow:", "s_setprio 0", "s_waitcnt vmcnt(0) lgkmcnt(0)", "s_barrier")
        a(ld4(KR, S_Q, S_QOFF), ld3(KR, S_Q, S_QOFF))
        a(f"s_lshl_b32 s{S_L0}, s{S_WV}, 12", f"v_add_u32 v{V_XW}, s{S_L0}, v{V_L16}",
          f"v_mov_b32 v{VK}, 0x3f80", f"v_mov_b32 v{VK+1}, 0", f"v_mov_b32 v{VK+2}, 0x3f80", f"v_mov_b32 v{VK+3}, 0",
          "s_mov_b64 exec, 0xffff", f"ds_write_b128 v{V_XW}, {vr(VK,4)} offset:3840", "s_mov_b64 exec, -1",
          f"v_mov_b32 v{KR+7}, 0", f"v_mov_b32 v{M}, 0xff800000", "s_nop 7")
        a(*[f"v_mov_b32 v{VO+r}, 0" for r in range(16)])
        a("s_waitcnt vmcnt(0)")
        self.normalize(KR, TT, S_SC)
        a(*wfrag(V_FW1, KR, 0), f"ds_read_b128 {Q(0,0)}, v{V_XW}", f"ds_read_b128 {Q(0,1)}, v{V_XW} offset:1024",
          "s_waitcnt lgkmcnt(0)")
        a(f"s_mov_b32 s{S_GV}, s{S_WVV}", f"s_mov_b32 s{S_CNT}, 16", "L_slow_group:")
        a(ld4(KR, S_K, S_GV), ld3(KR, S_K, S_GV), f"s_add_u32 m0, s{S_L0}, 2048", "s_nop 0", *dv(S_GV, 0), *dv(S_GV, 1),
          "s_waitcnt vmcnt(0)")
        self.normalize(KR, TT)
        a(*wfrag(V_FW1, KR, 0),
          f"v_mov_b32 v{V_KA}, v{V_L16}", f"v_mov_b32 v{V_VA}, v{V_KB+1}", f"v_mov_b32 v{V_VA+1}, v{V_KB+2}",
          f"s_mov_b32 s{S_G}, 8", "s_waitcnt lgkmcnt(0)", "s_barrier", "L_slow_tile:")
        a(rdk(0, 0), rdk(0, 1), rdv(0, 0, 0), rdv(0, 0, 1), rdv(0, 1, 0), rdv(0, 1, 1))
        a("s_waitcnt lgkmcnt(0)", qk(0, 0, 0, 0), qk(0, 1, 0, 0), "s_nop 15")
        a(f"v_max3_f32 v{MN}, v{VS}, v{VS+1}, v{M}")
        for r in range(2, 16, 2):
            a(f"v_max3_f32 v{MN}, v{VS+r}, v{VS+r+1}, v{MN}")
        a(f"v_mov_b32 v{AL}, v{MN}", "s_nop 1", f"v_permlane32_swap_b32 v{MN}, v{AL}", "s_nop 1",
          f"v_max_f32 v{MN}, v{MN}, v{AL}", f"v_sub_f32 v{AL}, v{M}, v{MN}", f"v_exp_f32 v{AL}, v{AL}", f"v_mov_b32 v{M}, v{MN}")
        for r in range(16):
            a(f"v_sub_f32 v{VS+r}, v{VS+r}, v{MN}", f"v_mul_f32 v{VO+r}, v{AL}, v{VO+r}")
        a(*[ex(0, r) for r in range(16)])
        a("s_nop 1", pv(0, 0, 0, 0), pv(0, 1, 0, 0),
          f"v_add_u32 v{V_KA}, 4096, v{V_KA}", f"v_add_u32 v{V_VA}, 4096, v{V_VA}", f"v_add_u32 v{V_VA+1}, 4096, v{V_VA+1}",
          "s_nop 15", f"s_sub_u32 s{S_G}, s{S_G}, 1", f"s_cmp_lg_u32 s{S_G}, 0", "s_cbranch_scc1 L_slow_tile")
        a("s_barrier", f"s_add_u32 s{S_GV}, s{S_GV}, 14336", f"s_sub_u32 s{S_CNT}, s{S_CNT}, 1", f"s_cmp_lg_u32 s{S_CNT}, 0",
          "s_cbranch_scc1 L_slow_group")
        if self.o.ldsout:
            a(f"v_mov_b32 v{V_VA}, v{V_XW}", f"v_add_u32 v{V_KA}, s{S_L0}, v{V_OUT}")
        self.finalize(VO)
        a("s_endpgm")

    def build(self):
        a, o = self.a, self.o
        n = "standalone__qk_norm__prompt_kernel"
        a('.amdgcn_target "amdgcn-amd-amdhsa--gfx950"', ".text", f".globl {n}", ".p2align 8", f".type {n},@function", f"{n}:")
        self.prologue()
        self.stage("first")
        self.stamp()
        a(f".p2align {o.align}", "L_loop:")
        self.stage("mid")
        a("s_cbranch_scc1 L_loop")
        self.stamp()
        self.stage("last")
        self.stamp()
        self.epilogue()
        self.stamp(True)
        if o.stamps:
            a("s_waitcnt vmcnt(0)")
        self.stamp()
        self.stamp_flush()
        a("L_end:", "s_endpgm")
        self.slow()
        kd = f""".section .rodata,"a"
.p2align 6
.amdhsa_kernel {n}
  .amdhsa_next_free_vgpr {NV}
  .amdhsa_next_free_sgpr {102 if o.stamps else 72}
  .amdhsa_accum_offset {(NV + 3) // 4 * 4}
  .amdhsa_group_segment_fixed_size 0
  .amdhsa_kernarg_size 56
  .amdhsa_user_sgpr_count 2
  .amdhsa_user_sgpr_kernarg_segment_ptr 1
  .amdhsa_system_sgpr_workgroup_id_x 1
.end_amdhsa_kernel
"""
        return HEADER + a.text() + kd


def parser():
    tup = lambda s: tuple(map(int, s.split(","))) if s != "none" else None
    ap = argparse.ArgumentParser()
    ap.add_argument("out")
    ap.add_argument("--stamps", action="store_true")
    ap.add_argument("--fine", type=int, default=0)
    ap.add_argument("--poll_p", type=int, default=4)
    ap.add_argument("--vm_pos", type=tup, default=(3, 4, 5))
    sched = lambda x: [(e.split(":")[0], int(e.split(":")[1]), int(e.split(":")[2])) for e in x.split(",") if e]
    ap.add_argument("--kbin", type=int, default=1)
    ap.add_argument("--pubbar", type=int, default=1)
    ap.add_argument("--directst", type=int, default=1)
    ap.add_argument("--st_s", type=int, default=2)
    ap.add_argument("--align", type=int, default=6)
    ap.add_argument("--stfl", type=lambda x: x.replace("_", " "), default="sc1")
    ap.add_argument("--b_p", type=int, default=2)
    ap.add_argument("--kb_pos", type=tup, default=(0, 1))
    ap.add_argument("--vpos", type=int, default=1)
    ap.add_argument("--yprio", type=int, default=1)
    ap.add_argument("--qgap", type=int, default=26)
    ap.add_argument("--kownpos", type=int, default=2)
    ap.add_argument("--p0", type=sched, default=sched("b:-1:1,o:2:0,y:4:0,y:6:1,y:7:0,y:8:1,y:11:0,y:13:1"))
    ap.add_argument("--pm", type=sched, default=sched("y:10:0,y:13:1"))
    ap.add_argument("--p7", type=sched, default=sched("y:11:0"))
    ap.add_argument("--own_p", type=int, default=0)
    ap.add_argument("--c_p", type=int, default=8)
    ap.add_argument("--pub_p", type=int, default=8)
    ap.add_argument("--xbar", type=tup, default=(14, 2))
    ap.add_argument("--outfl", default="sc1")
    ap.add_argument("--tail", type=int, default=2)
    ap.add_argument("--ldsout", type=int, default=1)
    ap.add_argument("--split", type=int, default=0)
    ap.add_argument("--s0", type=lambda x: (x.split(":")[0], tup(x.split(":")[1])), default=None)
    return ap


def generate(argv):
    o = parser().parse_args(argv)
    g = Gen(o)
    open(o.out, "w").write(g.build())
    return g.nst


if __name__ == "__main__":
    import sys
    print("stamps:", generate(sys.argv[1:]))
```

```python
import argparse

HEADER = """; Kernarg layout for this problem (56 bytes, ptrs only, base s[0:1]):
;   offset   0: d_in[0] q  shape=(1, 16, 4096, 28) dtype=bfloat16 strides=(3670016, 229376, 56, 2) contiguous=True
;   offset   8: d_in[1] k  shape=(1, 16, 4096, 28) dtype=bfloat16 strides=(3670016, 229376, 56, 2) contiguous=True
;   offset  16: d_in[2] v  shape=(1, 16, 4096, 28) dtype=bfloat16 strides=(3670016, 229376, 56, 2) contiguous=True
;   offset  24: d_in[3] t  shape=(16,) dtype=bfloat16 strides=(2,) contiguous=True
; @launch grid=(256,1,1) block=(512,1,1) lds=163840
;
; Fast path: subtracts the Cauchy-Schwarz bound |t|*log2(e) of the row maximum, taken only when |t| <= 20.75.
"""

HEAD_BYTES = 4096 * 56
WSK_HEAD = 128 * 2048
LOG2E = 0x3FB8AA3B
EPS = 0x358637BD
T_LIMIT = 0x41A6
BUF0, QAREA = 0x10000, 0x20000
ABORT_WORD, COUNT_WORD = 3852, 3860
SPIN_LIMIT = 1 << 16

V_LANE, V_T, V_ROW, V_L16, V_KA, V_OUT, V_T2, V_IDX = 0, 1, 2, 3, 4, 5, 6, 7
V_VA = 8
V_XW = 10
V_T3, V_T4 = 14, 15
VQ, VO, VS, VK, VV = 16, 48, 112, 176, 192
VR, VRT = 208, 232
V_FW = 240
V_FW1 = 241
V_KB = 242
V_NT = 246
V_ID = 248
V_KA1 = 250
NV = 253

S_Q, S_K, S_V, S_O, S_W, S_D = 20, 24, 28, 32, 36, 40
S_HEAD, S_C, S_WV, S_KS, S_QG = 44, 45, 46, 47, 48
S_G, S_GK, S_GV, S_L0, S_N0, S_CNT, S_WK, S_WVV = 49, 50, 51, 52, 53, 54, 55, 56
S_TB, S_SC, S_ABORT, S_QOFF, S_N1 = 57, 58, 59, 60, 61
S_CM, S_CH = 18, 19
S_M48 = 62
S_T = 64
S_ST = 72


class Asm:
    def __init__(self):
        self.lines = []
        self.n = 0

    def __call__(self, *ls):
        for l in ls:
            self.lines.append(l if l.endswith(":") or l.startswith(".") else "    " + l)

    def label(self, base):
        self.n += 1
        return f"{base}_{self.n}"

    def text(self):
        return "\n".join(self.lines) + "\n"


def vr(b, n): return f"v[{b}:{b+n-1}]"
def sr(b): return f"s[{b}:{b+3}]"
def S(t, o=0, n=16): return vr(VS + 16 * (t % 4) + o, n)
def K(u, f): return vr(VK + 8 * (u % 2) + 4 * f, 4)
def V(u, f): return vr(VV + 8 * (u % 2) + 4 * f, 4)
def Vh(u, f, h): return vr(VV + 8 * (u % 2) + 4 * f + 2 * h, 2)
def Q(b, f): return vr(VQ + 8 * b + 4 * f, 4)
def O(b): return vr(VO + 16 * b, 16)
def qk(t, f, u, b): return f"v_mfma_f32_32x32x16_bf16 {S(t)}, {K(u,f)}, {Q(b,f)}, {S(t) if f else 0}"
def pv(t, f, u, b): return f"v_smfmac_f32_32x32x32_bf16 {O(b)}, {V(u,f)}, {S(t,8*f,8)}, v{V_IDX}"
def rdk(u, f, b=0): return f"ds_read_b128 {K(u,f)}, v{V_KA1 if b else V_KA} offset:{(u%4)*16384+1024*f}"
def rdv(u, f, h, b=0): return f"ds_read_b64_tr_b16 {Vh(u,f,h)}, v{(V_KA1+1 if b else V_VA)+f} offset:{(u%4)*16384+224*h}"
def rdk_abs(u, f, n): return f"ds_read_b128 {K(u,f)}, v{V_KB} offset:{n*4096+1024*f}"
def rdv_abs(u, f, h, n): return f"ds_read_b64_tr_b16 {Vh(u,f,h)}, v{V_KB+1+f} offset:{n*4096+224*h}"


def resolve(stream, pending):
    out, q = [], list(pending)
    for x in stream:
        if isinstance(x, tuple) and x[0] == "need":
            idx = [i for i, t in enumerate(q) if t in x[1]]
            if idx:
                q = q[max(idx) + 1:]
                assert len(q) <= 15
                out.append(f"s_waitcnt lgkmcnt({len(q)})")
            continue
        text, tag = (x[1], x[2]) if isinstance(x, tuple) else (x, None)
        if text.startswith("ds_"):
            q.append(tag)
        elif "lgkmcnt(" in text:
            n = int(text.split("lgkmcnt(")[1].split(")")[0])
            q = q[len(q) - n:] if n and len(q) > n else ([] if n == 0 else q)
        out.append(text)
    return out, q
def ex(t, r): return f"v_exp_f32 v{VS+16*(t%4)+r}, v{VS+16*(t%4)+r}"
def ld4(R, srd, so): return f"buffer_load_dwordx4 {vr(R,4)}, v{V_ROW}, {sr(srd)}, s{so} offen"
def ld3(R, srd, so): return f"buffer_load_dwordx3 {vr(R+4,3)}, v{V_ROW}, {sr(srd)}, s{so} offen offset:16"
def dk(so, j): return [f"buffer_load_dwordx4 v{V_L16}, {sr(S_W)}, s{so} offen offset:{1024*j} sc1 lds"]
def dv(so, j):
    ins = f"buffer_load_dwordx4 v{V_L16}, {sr(S_V)}, s{so} offen offset:{1024*j} lds"
    return [f"s_mov_b64 exec, s[{S_M48}:{S_M48+1}]", ins, "s_mov_b64 exec, -1"] if j else [ins]
def wfrag(addr, R, off): return [f"ds_write_b128 v{addr}, {vr(R,4)} offset:{off}", f"ds_write_b128 v{addr}, {vr(R+4,4)} offset:{off+1024}"]
FLAGLOAD = f"buffer_load_dwordx4 {vr(V_XW,4)}, off, {sr(S_D)}, 0 sc1"


def norm_chunks(R, U, T, s_scale=None):
    un = lambda g, i: f"v_mfma_f32_4x4x4_16b_bf16 {vr(U+4*g,4)}, {vr(V_ID,2)}, {vr(R+i,2)}, 0"
    dot = lambda i: f"v_dot2_f32_bf16 v{T+i%2}, v{R+i}, v{R+i}, {f'v{T+i%2}' if i > 1 else 0}"
    mul = lambda p: f"v_pk_mul_f32 {vr(U+p,2)}, {vr(U+p,2)}, {vr(T,2)} op_sel_hi:[1,0]"
    cvt = lambda i, p: f"v_cvt_pk_bf16_f32 v{R+i}, v{U+p}, v{U+p+1}"
    grp = lambda g, i: [mul(4 * g), mul(4 * g + 2), cvt(i, 4 * g), cvt(i + 1, 4 * g + 2)]
    scale = [f"v_mul_f32 v{T}, s{s_scale}, v{T}"] if s_scale is not None else []
    return [(0, [un(0, 0), dot(0), dot(1), un(1, 2)] + [dot(i) for i in range(2, 7)]),
            (3, [f"v_add_f32 v{T}, v{T}, v{T+1}"]),
            (2, [f"v_add_f32_dpp v{T}, v{T}, v{T} quad_perm:[1,0,3,2] row_mask:0xf bank_mask:0xf", f"v_sqrt_f32 v{T}, v{T}"]),
            (1, [f"v_add_f32 v{T}, {hex(EPS)}, v{T}", f"v_rcp_f32 v{T}, v{T}"]),
            (1, scale + grp(0, 0) + [un(0, 4)] + grp(1, 2) + [un(1, 6)]),
            (0, grp(0, 4) + ["s_nop 0", mul(4), cvt(6, 4)])]


def norm_chunks_valu(R, U, T, s_scale=None):
    un = lambda i: [f"v_lshlrev_b32 v{U+2*(i%3)}, 16, v{R+i}", f"v_and_b32 v{U+2*(i%3)+1}, 0xffff0000, v{R+i}"]
    dot = lambda i: f"v_dot2_f32_bf16 v{T+i%2}, v{R+i}, v{R+i}, {f'v{T+i%2}' if i > 1 else 0}"
    one = lambda i: (un(i + 2) if i + 2 < 7 else []) + [
        f"v_pk_mul_f32 {vr(U+2*(i%3),2)}, {vr(U+2*(i%3),2)}, {vr(T,2)} op_sel_hi:[1,0]",
        f"v_cvt_pk_bf16_f32 v{R+i}, v{U+2*(i%3)}, v{U+2*(i%3)+1}"]
    scale = [f"v_mul_f32 v{T}, s{s_scale}, v{T}"] if s_scale is not None else []
    return [(0, [dot(i) for i in range(7)]),
            (3, [f"v_add_f32 v{T}, v{T}, v{T+1}"] + un(0)
             + [f"v_add_f32_dpp v{T}, v{T}, v{T} quad_perm:[1,0,3,2] row_mask:0xf bank_mask:0xf",
                f"v_sqrt_f32 v{T}, v{T}", un(1)[0], f"v_add_f32 v{T}, {hex(EPS)}, v{T}", f"v_rcp_f32 v{T}, v{T}", un(1)[1]]),
            (0, []), (0, scale + one(0) + one(1)), (0, one(2) + one(3)), (0, one(4) + one(5) + one(6))]


class Gen:
    def __init__(self, o):
        self.o = o
        self.a = Asm()
        self.nst = 0

    def stamp(self, fine=False):
        if self.o.stamps and self.o.fine == 2 and self.nst < 9:
            self.a(f"s_memtime s[{S_ST+2*self.nst}:{S_ST+2*self.nst+1}]")
            self.nst += 1
        elif self.o.stamps and (self.o.fine or not fine):
            j = self.nst
            self.a("s_memtime s[100:101]", "s_memrealtime s[98:99]", "s_waitcnt lgkmcnt(0)",
                   f"s_mov_b32 s{S_ST+2*j}, s100", f"s_mov_b32 s{S_ST+2*j+1}, s98")
            self.nst += 1

    def stamp_list(self):
        j = self.nst
        self.nst += 1
        return ["s_memtime s[100:101]", "s_memrealtime s[98:99]", "s_waitcnt lgkmcnt(0)",
                f"s_mov_b32 s{S_ST+2*j}, s100", f"s_mov_b32 s{S_ST+2*j+1}, s98"]

    def stamp_flush(self):
        if not self.o.stamps:
            return
        a, n = self.a, self.nst
        a("s_add_u32 s4, s16, 0x4000000", "s_addc_u32 s5, s17, 0", "s_mov_b32 s6, 0x100000", "s_mov_b32 s7, 0x00020000",
          "s_lshl_b32 s8, s2, 3", f"s_add_u32 s8, s8, s{S_WV}", f"s_mul_i32 s8, s8, {8*n}", "v_mov_b32 v1, 0", "s_mov_b64 exec, 1")
        for j in range(n):
            a(f"v_mov_b32 v14, s{S_ST+2*j}", f"v_mov_b32 v15, s{S_ST+2*j+1}",
              f"buffer_store_dwordx2 v[14:15], v1, s[4:7], s8 offen offset:{8*j}", "s_nop 1")

    def srd(self, d, base, s_off, nbytes):
        self.a(f"s_add_u32 s{d}, s{base}, s{s_off}", f"s_addc_u32 s{d+1}, s{base+1}, 0",
               f"s_mov_b32 s{d+2}, {nbytes}", f"s_mov_b32 s{d+3}, 0x00020000")

    def normalize(self, *job):
        for gap, c in (norm_chunks if self.o.mu & 1 else norm_chunks_valu)(*job):
            self.a(*([f"s_nop {gap - 1}"] if gap else []), *c)

    def tr_addresses(self, dst):
        a, t, u = self.a, V_T, V_T2
        a(f"v_lshrrev_b32 v{t}, 5, v0", f"v_mul_u32_u24 v{dst}, 448, v{t}",
          f"v_bfe_u32 v{t}, v0, 2, 2", f"v_mad_u32_u24 v{dst}, v{t}, 56, v{dst}",
          f"v_and_b32 v{t}, 1, v0", f"v_lshl_add_u32 v{dst}, v{t}, 5, v{dst}",
          f"v_bfe_u32 v{t}, v0, 4, 1", f"v_lshl_add_u32 v{dst}, v{t}, 4, v{dst}",
          f"v_bfe_u32 v{t}, v0, 1, 1", f"v_lshl_add_u32 v{dst}, v{t}, 3, v{dst}",
          f"v_and_b32 v{t}, 19, v0", f"v_cmp_eq_u32 vcc, 19, v{t}",
          f"v_add_u32 v{dst+1}, {2048+896}, v{dst}", f"v_add_u32 v{dst}, 2048, v{dst}", f"v_mov_b32 v{u}, 3840",
          f"v_cndmask_b32 v{dst}, v{dst}, v{u}, vcc", f"v_cndmask_b32 v{dst+1}, v{dst+1}, v{u}, vcc")

    def finalize(self, R, X=None):
        a, fl = self.a, self.o.outfl
        add = lambda i: [f"v_pk_add_f32 {vr(R+2*i,2)}, {vr(R+2*i,2)}, {vr(X+2*i,2)}"] if X is not None else ["s_nop 0"]
        a(*add(6), f"v_mov_b32 v{V_T3}, v{R+12}", f"v_mov_b32 v{V_T4}, v{R+12}", *add(0), *add(1),
          f"v_permlane32_swap_b32 v{V_T3}, v{V_T4}", *add(2), f"v_rcp_f32 v{V_T4}, v{V_T4}", *add(3))
        for i in range(8):
            if X is not None and i in (4, 5, 7):
                a(*add(i))
            a(f"v_pk_mul_f32 {vr(R+2*i,2)}, {vr(R+2*i,2)}, {vr(V_T3,2)} op_sel:[0,1] op_sel_hi:[1,1]",
              f"v_cvt_pk_bf16_f32 v{R+i}, v{R+2*i}, v{R+2*i+1}")
            if self.o.ldsout:
                if i in (1, 3, 5):
                    a(f"ds_write_b64 v{V_KA}, {vr(R+i-1,2)} offset:{4*(i-1)}")
                continue
            if i == 3:
                a(f"buffer_store_dwordx4 {vr(R,4)}, v{V_OUT}, {sr(S_O)}, s{S_QOFF} offen {fl}")
            if i == 5:
                a(f"buffer_store_dwordx2 {vr(R+4,2)}, v{V_OUT}, {sr(S_O)}, s{S_QOFF} offen offset:16 {fl}")
        if self.o.ldsout:
            a("s_mov_b32 exec_hi, 0", f"ds_write_b64 v{V_KA}, {vr(R+6,2)} offset:24", "s_mov_b32 exec_hi, -1",
              f"ds_read_b128 {vr(R+8,4)}, v{V_VA}", f"ds_read_b128 {vr(R+12,4)}, v{V_VA} offset:1024", "s_waitcnt lgkmcnt(1)",
              f"buffer_store_dwordx4 {vr(R+8,4)}, v{V_L16}, {sr(S_O)}, s{S_QOFF} offen {fl}",
              f"s_mov_b64 exec, s[{S_M48}:{S_M48+1}]", "s_waitcnt lgkmcnt(0)",
              f"buffer_store_dwordx4 {vr(R+12,4)}, v{V_L16}, {sr(S_O)}, s{S_QOFF} offen offset:1024 {fl}",
              "s_mov_b64 exec, -1")
            return
        a("s_mov_b32 exec_hi, 0",
          f"buffer_store_dwordx2 {vr(R+6,2)}, v{V_OUT}, {sr(S_O)}, s{S_QOFF} offen offset:24 {fl}",
          "s_mov_b32 exec_hi, -1")

    def prio(self, n, role="y"):
        if role == "b":
            return [f"s_setprio {n}"]
        l = self.a.label("L_prio")
        return [f"s_cbranch_{'vccnz' if role == 'y' else 'vccz'} {l}", f"s_setprio {n}", f"{l}:"]

    def poll_block(self):
        return [f"s_cmp_lg_u32 s{S_CNT}, 3", "s_cbranch_scc1 L_ready", f"s_mov_b32 s{S_T}, 0",
                "L_poll:", "s_waitcnt vmcnt(0)",
                f"v_and_b32 v{V_XW}, v{V_XW}, v{V_XW+1}", f"v_and_b32 v{V_XW+2}, v{V_XW+2}, v{V_XW+3}",
                f"v_and_b32 v{V_XW}, v{V_XW}, v{V_XW+2}", f"s_add_u32 s{S_T}, s{S_T}, 1",
                f"v_readfirstlane_b32 s{S_T+1}, v{V_XW}",
                *([f"s_cmp_eq_u32 s{S_WV}, 5", f"s_cselect_b32 s{S_T+1}, 0, s{S_T+1}"] if self.o.forceabort else []),
                f"s_cmp_eq_u32 s{S_T+1}, 0xdddddddd", "s_cbranch_scc1 L_ready",
                FLAGLOAD, f"s_cmp_lt_u32 s{S_T}, {64 if self.o.forceabort else SPIN_LIMIT}", "s_cbranch_scc1 L_poll",
                "s_waitcnt vmcnt(0)", f"s_mov_b32 s{S_ABORT}, 1", "L_ready:"]

    def stage(self, kind, par, poll=False, close=False):
        a, o = self.a, self.o
        sh = {(p, s): [] for p in range(16) for s in range(4)}
        post = {(p, s): [] for p in range(16) for s in range(4)}
        last, first, mid = kind == "last", kind == "first", kind == "mid"
        t0 = 16 - 4 * o.tail if last else 99
        unit = lambda t: (t // 4, t % 4) if t < t0 else (t0 // 4 + t - t0, 3)
        mf = {}
        for p in range(16):
            for f in range(2):
                mf[(p, f)] = qk(p + 1, f, *unit(p + 1))
                mf[(p, 2 + f)] = pv(p - 1, f, *unit(p - 1))
        if first:
            mf[(0, 2)] = mf[(0, 3)] = None
        if last:
            mf[(15, 0)], mf[(15, 1)], mf[(15, 2)], mf[(15, 3)] = mf[(15, 2)], mf[(15, 3)], None, None
        nvm = 0

        if not last:
            sh[(12, o.bs)] += ["s_waitcnt vmcnt(0) lgkmcnt(0)", "s_barrier"]
        if mid:
            if close:
                sh[(15, 3)] += [f"s_sub_u32 s{S_CNT}, s{S_CNT}, 1", f"s_cmp_lg_u32 s{S_CNT}, 0"]
            if poll:
                l = a.label("L_fl")
                sh[(o.poll_p - 2, 2)] += [f"s_cmp_lg_u32 s{S_CNT}, 3", f"s_cbranch_scc1 {l}", FLAGLOAD, f"{l}:"]
                sh[(o.poll_p, 0)] += self.poll_block()
            for g in range(4):
                half, part, p = g // 2, g % 2, o.poll_p + g
                sh[(p, 0)] += [f"s_add_u32 m0, s{S_L0}, {par*BUF0 + half*32768 + part*2048}"]
                if part == 0:
                    sh[(p - 2, 3)] += [f"s_cmp_ge_u32 s{S_G}, s{S_CM}", f"s_addc_u32 s{S_CH}, s{S_G}, 0"]
                    sh[(p - 1, 0)] += [f"s_add_u32 s{S_G}, s{S_G}, 1"]
                    sh[(p - 1, 3)] += [f"s_lshl_b32 s{S_GK}, s{S_CH}, 14", f"s_add_u32 s{S_GK}, s{S_GK}, s{S_WK}"]
                else:
                    sh[(p - 1, 3)] += [f"s_mul_i32 s{S_GV}, s{S_CH}, 14336", f"s_add_u32 s{S_GV}, s{S_GV}, s{S_WVV}"]
                for j in range(2):
                    sh[(p, o.ds[j])] += dv(S_GV, j) if part else dk(S_GK, j)
        for role, p, n in (o.p0 if first else o.p7 if last else o.pm):
            if p >= 0:
                sh[(p, 1)] += self.prio(n, role)

        for p in range(16):
            u, jj = p // 4 + 1, p % 4
            if jj == 1 and 4 * (u - 1) < t0:
                sh[(p, 1)].append(("need", [f"V{u-1}"]))
            late = first and o.kbin and u == 2
            if 4 * u >= t0 or (late and jj < 2):
                continue
            if jj == 2 and not late:
                sh[(p, o.vs[0])].append(("need", [f"K{u}"]))
            b = par ^ (u == 4)
            if jj < 2:
                sh[(p, (o.ks0 if first else o.ks) if p != 12 else 3)].append(("ds", rdk(u, jj, b), f"K{u}"))
            else:
                sh[(p, o.vs[0])].append(("ds", rdv(u, jj - 2, 0, b), f"V{u}"))
                sh[(p, o.vs[1])].append(("ds", rdv(u, jj - 2, 1, b), f"V{u}"))
        if first:
            ev = []
            def spread(R, p0, addr, off, tag):
                c = (norm_chunks if o.mu & 2 else norm_chunks_valu)(R, VRT, V_NT)
                slots = [(p0 + k // 4, k % 4) for k in range(8)]
                pos = [slots[k] for k in (0, 1, 2, 3, 4, 6)]
                post[pos[0]].append(("wait", tag))
                for k in range(6):
                    post[pos[k]] += [x for x in c[k][1] if not x.startswith("s_nop")]
                sh[slots[7]] += wfrag(addr, R, off)
                return slots[7]
            w = spread(VR, o.own_p, V_FW1, 32768, "Kown")
            if o.directst:
                va, st0, st1 = V_T4, (w[0], 1), (w[0], 3)
            else:
                sh[w] += [("ds", f"ds_read_b128 {vr(VR,4)}, v{V_T} offset:32768", "rb"), ("ds", f"ds_read_b128 {vr(VR+4,4)}, v{V_T} offset:33792", "rb")]
                va, st0, st1 = V_L16, (w[0] + 1, o.st_s), (w[0] + 1, o.st_s + 1)
                sh[st0].append(("need", ["rb"]))
            ev.append((st0, [f"buffer_store_dwordx4 {vr(VR,4)}, v{va}, {sr(S_W)}, s{S_GK} offen {o.stfl}"], "st0"))
            ev.append((st1, [f"buffer_store_dwordx4 {vr(VR+4,4)}, v{va}, {sr(S_W)}, s{S_GK} offen offset:1024 {o.stfl}"], "st"))
            if o.kbin:
                spread(VR + 8, o.b_p, V_FW, 32768, "Kb")
            spread(VR + 16, o.c_p, V_FW1, 0, "Kc")
            assert o.kbin and o.directst
            p = o.kb_pos
            ev += [((p[0], 1), [ld4(VR + 8, S_K, S_N0)], "x"), ((p[0], 2), [ld3(VR + 8, S_K, S_N0)], "Kb"),
                   ((p[1], 0), [f"s_add_u32 m0, s{S_L0}, {BUF0 + 32768 + 2048}", "s_nop 0"] + dv(S_N0, 0), "x"),
                   ((p[1], 2), dv(S_N0, 1), "Vb")]
            p = o.vm_pos
            ev += [((p[0], 1), [ld4(VR + 16, S_K, S_N1)], "x"), ((p[0], 2), [ld3(VR + 16, S_K, S_N1)], "Kc"),
                   ((p[1], 1), dv(S_N1, 0), "x"), ((p[1], 2), dv(S_N1, 1), "x"),
                   ((p[2], 1), dv(S_QOFF, 0), "x"), ((p[2], 2), dv(S_QOFF, 1), "x")]
            sh[(p[1], 0)] += [f"s_add_u32 m0, s{S_L0}, 2048"]
            sh[(p[2], 0)] += [f"s_add_u32 m0, s{S_L0}, {32768 + 2048}"]
            ev.sort(key=lambda e: e[0])
            assert len({e[0] for e in ev}) == len(ev)
            for pos, ins, _ in ev:
                sh[pos] += ins
            order = ["x"] * 7 + ["Kown"] + [e[2] for e in ev]
            def cnt(tag, pos, incl):
                n = 8 + sum(1 for e in ev if e[0] < pos or (incl and e[0] == pos))
                assert order.index(tag) < n
                return n - order.index(tag) - 1
            for pos in post:
                post[pos] = [f"s_waitcnt vmcnt({cnt(x[1], pos, True)})" if isinstance(x, tuple) and x[0] == "wait" else x for x in post[pos]]
            if o.kbin:
                sh[(6, 0)] = [f"s_waitcnt vmcnt({cnt('Vb', (6, 0), False)}) lgkmcnt(0)", "s_barrier",
                              ("ds", rdk(2, 0), "K2"), ("ds", rdk(2, 1), "K2")] + sh[(6, 0)]
                sh[(6, 3)] = [("need", ["K2"])] + sh[(6, 3)]
            l = a.label("L_pub")
            if o.pubbar:
                pub = (o.pub_p, 0)
                sh[pub] = [f"s_waitcnt vmcnt({cnt('st', pub, False)})", "s_barrier",
                           f"s_cmp_lg_u32 s{S_WV}, 0", f"s_cbranch_scc1 {l}", "s_mov_b64 exec, 1",
                           f"buffer_store_byte v{V_IDX}, v0, {sr(S_D)}, s{S_C} offen sc1",
                           "s_mov_b64 exec, -1", f"{l}:"] + sh[pub]
                assert all(e[0] < pub for e in ev)
        if first and not o.pubbar:
            pub = (o.pub_p, 2)
            post[(o.pub_p, 1)] += [f"v_mov_b32 v{V_T}, {COUNT_WORD}", f"v_mov_b32 v{V_T2}, 1"]
            sh[pub] = [f"s_waitcnt vmcnt({cnt('st', pub, False)})", "s_mov_b64 exec, 1",
                       ("ds", f"ds_add_rtn_u32 v{V_T2}, v{V_T}, v{V_T2}", "cnt"), "s_mov_b64 exec, -1"] + sh[pub]
            post[(o.pub_p + 1, 0)] += [("need", ["cnt"]), f"v_readfirstlane_b32 s{S_T}, v{V_T2}"]
            sh[(o.pub_p + 1, 2)] = [f"s_cmp_lg_u32 s{S_T}, 7", f"s_cbranch_scc1 {l}", "s_mov_b64 exec, 1",
                                    f"buffer_store_byte v{V_IDX}, v0, {sr(S_D)}, s{S_C} offen sc1",
                                    "s_mov_b64 exec, -1", f"{l}:"] + sh[(o.pub_p + 1, 2)]
            assert all(e[0] < pub for e in ev) and o.pub_p > o.own_p + 2
            if o.pub_p >= 12:
                assert [e[2] for e in ev[-2:]] == ["st0", "st"] and sh[(12, 2)][0 if o.pub_p > 12 else 4].startswith("s_waitcnt vmcnt(0)")
                sh[(12, 2)][0 if o.pub_p > 12 else 4] = "s_waitcnt vmcnt(2) lgkmcnt(0)"
        if last:
            T = S_T
            sh[(0, 0)] += [f"s_lshl_b32 s{T+4}, s{S_QG}, 2"]
            for j in range(4):
                sh[(j, 1)] += [f"s_add_u32 s{T}, s{S_KS}, {1+j}"]
                sh[(j, 2)] += [f"s_and_b32 s{T}, s{T}, 3", f"s_add_u32 s{T}, s{T}, s{T+4}"]
                sh[(j, 3)] = [f"s_mul_i32 s{T}, s{T}, 12288", f"s_add_u32 s{T}, s{T}, {BUF0 + 4096 * (j % 3 if j < 3 else 0)}"] + sh[(j, 3)]
                post[(j, 3)] += [f"v_add_u32 v{V_XW+j}, s{T}, v{V_L16}"]
            for t in range(t0, 16):
                U, n = unit(t)[0], t
                for f in range(2):
                    sh[(t - 2, f)].append(("ds", rdk_abs(U, f, n), f"K{U}"))
                    vp = (t, f) if t > t0 else (t - 1, f)
                    sh[vp] += [("ds", rdv_abs(U, f, h, n), f"V{U}") for h in range(2)]
                sh[(t - 2, 3)].insert(0, ("need", [f"K{U}"]))
                if t < 14:
                    sh[(t + 1, 1)].insert(0, ("need", [f"V{U}"]))
            slots = [(p, s) for p in range(t0 - 2, 15) for s in (2, 3) if (t0 - 2, 2) <= (p, s) < o.xbar]
            items = [(j, g) for j in range(3) for g in range(4)]
            per = -(-len(items) // len(slots))
            k = 0
            for pos in slots:
                for _ in range(per):
                    if k < len(items) and pos >= (t0 - 2 + items[k][0], 2):
                        j, g = items[k]
                        sh[pos].append(f"ds_write_b128 v{V_XW+j}, {vr(VO+16*j+4*g,4)} offset:{1024*g}")
                        k += 1
            assert k == len(items)
            xr = lambda j: [("ds", f"ds_read_b128 {vr(VO+16*j+4*g,4)}, v{V_XW+3} offset:{4096*j+1024*g}", f"X{j}") for g in range(4)]
            post[(4, 3)] += [f"v_mov_b32 v{V_T}, {ABORT_WORD}"]
            sh[o.xbar] += [f"s_cmp_eq_u32 s{S_ABORT}, 0", "s_cbranch_scc1 L_noabort", f"ds_write_b32 v{V_T}, v{V_IDX}",
                           "L_noabort:", "s_waitcnt lgkmcnt(0)", "s_barrier",
                           ("ds", f"ds_read_b32 v{V_T2}, v{V_T}", "AB")] + xr(0) + xr(1)
            post[(14, 3)].append(("need", [f"V{unit(14)[0]}"]))
            post[(15, 1)] += [("need", ["X0"])] + xr(2)
            post[(15, 3)].append(("need", [f"V{unit(15)[0]}", "AB", "X1"]))

        stream = []
        for p in range(16):
            for s in range(4):
                if mf[(p, s)]:
                    stream.append(mf[(p, s)])
                stream += sh[(p, s)] + [ex(p, 4 * s + r) for r in range(4)] + post[(p, s)]
                if o.s0 and kind == o.s0[0] and s == 3 and p in o.s0[1]:
                    stream += self.stamp_list()
        if first and o.fill:
            stream.insert(stream.index(mf[(0, 1)]) + 1, ("need", ["Q"]))
        out, q = resolve(stream, (["Q"] * 4 if first and o.fill else []) + ["V0"] * 4)
        assert last or q == ["V4"] * len(q) and len(q) <= 4, q
        a(*out)
        self.last_unit = unit(15)[0]

    def deferred_scalars(self):
        T = S_T
        base = lambda d, b, off: [[f"s_add_u32 s{d}, s{b}, s{off}", f"s_addc_u32 s{d+1}, s{b+1}, 0"]]
        return (base(S_W, 16, T + 1) + [[f"s_lshl_b32 s{S_GK}, s{S_C}, 14", f"s_add_u32 s{S_GK}, s{S_GK}, s{S_WK}"]]
                + base(S_D, 14, T + 2) + base(S_O, 12, T)
                + [[f"s_max_u32 s{S_CM}, s{S_C}, 3", f"s_mov_b32 s{S_G}, 3"], [f"s_mov_b32 s{S_ABORT}, 0", f"s_mov_b32 s{S_CNT}, 3"]])

    def prologue(self):
        a, o = self.a, self.o
        T = S_T
        a("s_cmp_ge_u32 s2, 256", "s_cbranch_scc1 L_end")
        self.stamp()
        a("s_load_dwordx8 s[4:11], s[0:1], 0", "s_load_dwordx4 s[12:15], s[0:1], 32", "s_load_dwordx2 s[16:17], s[0:1], 48")
        a(f"v_lshrrev_b32 v{V_T}, 6, v0", "v_and_b32 v0, 63, v0", f"v_readfirstlane_b32 s{S_WV}, v{V_T}",
          f"s_and_b32 s{S_HEAD}, s2, 7", f"s_lshl_b32 s{S_HEAD}, s{S_HEAD}, 1", f"s_lshr_b32 s{T}, s2, 7",
          f"s_add_u32 s{S_HEAD}, s{S_HEAD}, s{T}", f"s_bfe_u32 s{S_C}, s2, 0x40003",
          f"v_mul_u32_u24 v{V_ROW}, 28, v0", f"v_lshlrev_b32 v{V_L16}, 4, v0",
          f"s_mul_i32 s{T}, s{S_HEAD}, {HEAD_BYTES}", f"s_mul_i32 s{S_WVV}, s{S_WV}, 1792",
          f"s_mul_i32 s{S_QOFF}, s{S_C}, 14336", f"s_add_u32 s{S_QOFF}, s{S_QOFF}, s{S_WVV}",
          f"s_cmp_eq_u32 s{S_C}, 0", f"s_cselect_b32 s{S_GV}, 14336, 0", f"s_add_u32 s{S_GV}, s{S_GV}, s{S_WVV}",
          f"s_and_b32 s{T+3}, s{S_HEAD}, 14", f"s_lshl_b32 s{T+3}, s{T+3}, 1")
        for d in (S_K, S_Q, S_V):
            a(f"s_mov_b32 s{d+2}, {HEAD_BYTES}", f"s_mov_b32 s{d+3}, 0x00020000")
        a(f"s_lshl_b32 s{S_L0}, s{S_WV}, 12", f"s_lshl_b32 s{S_WK}, s{S_WV}, 11",
          f"s_and_b32 s{S_KS}, s{S_WV}, 3", f"s_lshr_b32 s{S_QG}, s{S_WV}, 2")
        zero = lambda b: f"v_mfma_f32_32x32x16_bf16 {O(b)}, {vr(VV,4)}, {vr(VV,4)}, 0"
        rec = Asm()
        self.a, keep = rec, self.a
        rec(*[f"v_mov_b32 v{VV+i}, 0" for i in range(4)])
        if o.mu:
          rec(f"v_and_b32 v{V_T}, 2, v0", f"v_cmp_eq_u32 vcc, 0, v{V_T}", f"v_and_b32 v{V_T}, 16, v{V_L16}",
            f"v_mov_b32 v{V_T2}, 0x3f80", f"v_lshlrev_b32 v{V_T}, v{V_T}, v{V_T2}",
            f"v_cndmask_b32 v{V_ID}, 0, v{V_T}, vcc", f"v_sub_u32 v{V_ID+1}, v{V_T}, v{V_ID}")
        rec(f"v_mov_b32 v{VK}, 0x3f80", f"v_mov_b32 v{VK+1}, 0", f"v_mov_b32 v{VK+2}, 0x3f80", f"v_mov_b32 v{VK+3}, 0",
            zero(0), f"s_add_u32 m0, s{S_L0}, {BUF0 + 2048}",
            f"v_lshlrev_b32 v{V_T}, 11, v0", f"v_and_b32 v{V_T}, 0x18000, v{V_T}",
            f"v_and_b32 v{V_T2}, 0xf0, v{V_L16}", f"v_add3_u32 v{V_T}, v{V_T}, v{V_T2}, s{S_L0}",
            f"ds_write_b128 v{V_T}, {vr(VK,4)} offset:3840",
            zero(1), f"s_add_u32 s{T+5}, s{S_WK}, {QAREA}",
            f"v_and_b32 v{V_T}, 1, v0", f"v_lshlrev_b32 v{V_T}, 9, v{V_T}", f"v_lshrrev_b32 v{V_FW1}, 1, v0",
            f"v_lshl_add_u32 v{V_T4}, v{V_FW1}, 4, v{V_T}", f"v_add_u32 v{V_FW1}, s{S_L0}, v{V_T4}",
            f"v_add_u32 v{V_FW}, {BUF0}, v{V_FW1}", f"v_add_u32 v{V_T3}, s{T+5}, v{V_T4}",
            zero(2), f"s_mov_b32 s{S_M48}, -1")
        self.tr_addresses(V_KB + 1)
        rec(zero(3), f"s_mov_b32 s{S_M48+1}, 0xffff",
            f"s_lshl_b32 s{T+4}, s{S_KS}, 12", f"s_add_u32 s{T+5}, s{T+4}, {BUF0}",
            f"v_add_u32 v{V_KA}, s{T+5}, v{V_L16}", f"v_add_u32 v{V_VA}, s{T+5}, v{V_KB+1}", f"v_add_u32 v{V_VA+1}, s{T+5}, v{V_KB+2}",
            f"v_add_u32 v{V_KA1}, s{T+4}, v{V_L16}", f"v_add_u32 v{V_KA1+1}, s{T+4}, v{V_KB+1}", f"v_add_u32 v{V_KA1+2}, s{T+4}, v{V_KB+2}",
            f"v_mov_b32 v{V_KB}, v{V_L16}", f"v_mov_b32 v{V_IDX}, 0xdddddddd", f"v_mov_b32 v{VS+7}, 0x3f80",
            f"v_and_b32 v{V_T}, 31, v0", f"v_mul_u32_u24 v{V_T}, 56, v{V_T}", f"v_lshrrev_b32 v{V_T2}, 5, v0",
            f"v_lshl_add_u32 v{V_OUT}, v{V_T2}, 5, v{V_T}", *[f"v_mov_b32 v{VR+8*i+7}, 0x3f80" for i in range(3)])
        rec(f"s_lshl_b32 s{T+5}, s{S_QG}, 13", f"s_add_u32 s{T+5}, s{T+5}, {QAREA}", f"s_lshl_b32 s{T+4}, s{S_KS}, 11",
            f"v_add_u32 v{V_T}, s{T+4}, v{V_L16}")
        for j in range(4):
            rec(f"v_add_u32 v{V_T2}, {2048*(1+j)}, v{V_T}", f"v_and_b32 v{V_T2}, 0x1fff, v{V_T2}", f"v_add_u32 v{V_XW+j}, s{T+5}, v{V_T2}")
        for j, d in ((1, S_N0), (2, S_N1)):
            rec(f"s_cmp_le_u32 s{S_C}, {j}", f"s_cselect_b32 s{d}, {j+1}, {j}", f"s_mul_i32 s{d}, s{d}, 14336",
                f"s_add_u32 s{d}, s{d}, s{S_WVV}")
        rec(f"s_lshl_b32 s{T+1}, s{S_HEAD}, 18", f"s_lshl_b32 s{T+2}, s{S_HEAD}, 4",
            f"s_mov_b32 s{S_W+2}, {WSK_HEAD}", f"s_mov_b32 s{S_D+2}, 16", f"s_mov_b32 s{S_O+2}, {HEAD_BYTES}",
            *[f"s_mov_b32 s{d+3}, 0x00020000" for d in (S_W, S_D, S_O)],
            f"s_cmp_lt_u32 s{S_WV}, 4", "s_cselect_b64 vcc, -1, 0")
        self.a = keep
        setup = [l.strip() for l in rec.lines]
        assert o.split >= len(setup) or not setup[o.split].startswith(("s_cselect", "v_cndmask"))
        a(*setup[:o.split])
        a("s_waitcnt lgkmcnt(0)")
        self.stamp(True)
        base = lambda d, b: [f"s_add_u32 s{d}, s{b}, s{T}", f"s_addc_u32 s{d+1}, s{b+1}, 0"]
        va = [*dv(S_GV, 0), *dv(S_GV, 1)]
        q2 = o.split + o.qgap
        assert q2 >= len(setup) or not setup[q2].startswith(("s_cselect", "v_cndmask"))
        a(*base(S_K, 6), ld4(VS, S_K, S_GV), ld3(VS, S_K, S_GV), f"s_load_dword s{S_TB}, s[10:11], s{T+3}", *setup[o.split:q2],
          *base(S_Q, 4), ld4(VS + 8, S_Q, S_QOFF), ld3(VS + 8, S_Q, S_QOFF), *base(S_V, 8))
        kown = [ld4(VR, S_K, S_QOFF), ld3(VR, S_K, S_QOFF)]
        assert o.vpos == 1 or o.kownpos == 2
        self.stamp(True)
        a(*setup[q2:])
        if o.yprio:
            a(*self.prio(1))
        if o.vpos == 1:
            a(*va)
        if o.kownpos == 1:
            a(*kown)
        self.stamp(True)
        a(f"s_waitcnt vmcnt({6 if o.kownpos == 1 else 4 if o.vpos == 1 else 2})")
        self.stamp()
        self.normalize(VS, VS + 16, VS + 24)
        a(*wfrag(V_FW, VS, 0))
        self.stamp(True)
        if o.vpos == 2:
            a(*va)
        if o.kownpos == 2:
            a(*kown)
        a("s_waitcnt lgkmcnt(0)",
          f"s_bitcmp1_b32 s{S_HEAD}, 0", f"s_cselect_b32 s{T+3}, 16, 0", f"s_lshr_b32 s{S_TB}, s{S_TB}, s{T+3}",
          f"s_and_b32 s{T+3}, s{S_TB}, 0x7fff", f"s_lshl_b32 s{S_TB}, s{S_TB}, 16",
          f"v_mov_b32 v{V_T}, {hex(LOG2E)}", f"v_mul_f32 v{V_T}, s{S_TB}, v{V_T}",
          f"s_cmp_gt_u32 s{T+3}, {hex(T_LIMIT)}", f"v_readfirstlane_b32 s{S_SC}, v{V_T}",
          f"v_mul_f32 v{V_T2}, -0.5, abs(v{V_T})", f"v_cvt_pk_bf16_f32 v{VS+15}, v{V_T2}, 0",
          "s_cbranch_scc1 L_slow0")
        self.stamp(True)
        a("s_waitcnt vmcnt(4)")
        self.stamp(True)
        self.normalize(VS + 8, VS + 16, VS + 24, S_SC)
        a(*wfrag(V_T3, VS + 8, 0))
        self.stamp(True)
        a("s_waitcnt vmcnt(2) lgkmcnt(0)", "s_barrier")
        self.stamp()
        rq = lambda j: [f"ds_read_b128 {Q(j,0)}, v{V_XW+j}", f"ds_read_b128 {Q(j,1)}, v{V_XW+j} offset:1024"]
        rv = [rdv(0, 0, 0), rdv(0, 0, 1), rdv(0, 1, 0), rdv(0, 1, 1)]
        pr = sum((self.prio(n, role) for role, p, n in o.p0 if p < 0), [])
        d = self.deferred_scalars()
        if o.fill:
            a(rdk(0, 0), rq(0)[0], rdk(0, 1), rq(0)[1], *rq(1), *pr, *d[0], *d[1], *d[2], *d[3],
              "s_waitcnt lgkmcnt(4)", qk(0, 0, 0, 0), *d[4], "s_waitcnt lgkmcnt(2)", qk(0, 1, 0, 0),
              *rq(2), *rq(3), *rv, *d[5], "s_waitcnt lgkmcnt(8)")
        else:
            a(rdk(0, 0), rdk(0, 1), *rq(0), *rq(1), *rq(2), *rq(3), *rv, *pr)
            a(*d[0], *d[1], "s_waitcnt lgkmcnt(10)", qk(0, 0, 0, 0), qk(0, 1, 0, 0), *d[2], *d[3], *d[4], *d[5],
              "s_waitcnt lgkmcnt(4)", "s_nop 1")

    def epilogue(self):
        a = self.a
        U = self.last_unit
        a(pv(15, 0, U, 3), f"v_readfirstlane_b32 s{S_T}, v{V_T2}", pv(15, 1, U, 3),
          f"s_cmp_lg_u32 s{S_T}, 0", "s_cbranch_scc1 L_slow")
        a(*[f"v_pk_add_f32 {vr(VO+2*i,2)}, {vr(VO+2*i,2)}, {vr(VO+16+2*i,2)}" for i in range(8)])
        if self.o.ldsout:
            a(f"v_mov_b32 v{V_VA}, v{V_XW+3}", f"v_sub_u32 v{V_KA}, v{V_XW+3}, v{V_L16}", f"v_add_u32 v{V_KA}, v{V_KA}, v{V_OUT}")
        a("s_waitcnt lgkmcnt(0)")
        a(*[f"v_pk_add_f32 {vr(VO+2*i,2)}, {vr(VO+2*i,2)}, {vr(VO+32+2*i,2)}" for i in range(8)])
        self.finalize(VO + 48, VO)

    def slow(self):
        a = self.a
        KR, TT, M, MN, AL = VS + 16, VS + 40, VS + 48, VS + 49, VS + 50
        a("L_slow0:", *self.deferred_scalars()[3])
        a("L_slow:", "s_setprio 0", "s_waitcnt vmcnt(0) lgkmcnt(0)", "s_barrier")
        a(ld4(KR, S_Q, S_QOFF), ld3(KR, S_Q, S_QOFF))
        a(f"s_lshl_b32 s{S_L0}, s{S_WV}, 12", f"v_add_u32 v{V_XW}, s{S_L0}, v{V_L16}",
          f"v_mov_b32 v{VK}, 0x3f80", f"v_mov_b32 v{VK+1}, 0", f"v_mov_b32 v{VK+2}, 0x3f80", f"v_mov_b32 v{VK+3}, 0",
          "s_mov_b64 exec, 0xffff", f"ds_write_b128 v{V_XW}, {vr(VK,4)} offset:3840", "s_mov_b64 exec, -1",
          f"v_mov_b32 v{KR+7}, 0", f"v_mov_b32 v{M}, 0xff800000", "s_nop 7")
        a(*[f"v_mov_b32 v{VO+r}, 0" for r in range(16)])
        a("s_waitcnt vmcnt(0)")
        self.normalize(KR, TT, VS + 52, S_SC)
        a(*wfrag(V_FW1, KR, 0), f"ds_read_b128 {Q(0,0)}, v{V_XW}", f"ds_read_b128 {Q(0,1)}, v{V_XW} offset:1024",
          "s_waitcnt lgkmcnt(0)")
        a(f"s_mov_b32 s{S_GV}, s{S_WVV}", f"s_mov_b32 s{S_CNT}, 16", "L_slow_group:")
        a(ld4(KR, S_K, S_GV), ld3(KR, S_K, S_GV), f"s_add_u32 m0, s{S_L0}, 2048", "s_nop 0", *dv(S_GV, 0), *dv(S_GV, 1),
          "s_waitcnt vmcnt(0)")
        self.normalize(KR, TT, VS + 52)
        a(*wfrag(V_FW1, KR, 0),
          f"v_mov_b32 v{V_KA}, v{V_L16}", f"v_mov_b32 v{V_VA}, v{V_KB+1}", f"v_mov_b32 v{V_VA+1}, v{V_KB+2}",
          f"s_mov_b32 s{S_G}, 8", "s_waitcnt lgkmcnt(0)", "s_barrier", "L_slow_tile:")
        a(rdk(0, 0), rdk(0, 1), rdv(0, 0, 0), rdv(0, 0, 1), rdv(0, 1, 0), rdv(0, 1, 1))
        a("s_waitcnt lgkmcnt(0)", qk(0, 0, 0, 0), qk(0, 1, 0, 0), "s_nop 15")
        a(f"v_max3_f32 v{MN}, v{VS}, v{VS+1}, v{M}")
        for r in range(2, 16, 2):
            a(f"v_max3_f32 v{MN}, v{VS+r}, v{VS+r+1}, v{MN}")
        a(f"v_mov_b32 v{AL}, v{MN}", "s_nop 1", f"v_permlane32_swap_b32 v{MN}, v{AL}", "s_nop 1",
          f"v_max_f32 v{MN}, v{MN}, v{AL}", f"v_sub_f32 v{AL}, v{M}, v{MN}", f"v_exp_f32 v{AL}, v{AL}", f"v_mov_b32 v{M}, v{MN}")
        for r in range(16):
            a(f"v_sub_f32 v{VS+r}, v{VS+r}, v{MN}", f"v_mul_f32 v{VO+r}, v{AL}, v{VO+r}")
        a(*[ex(0, r) for r in range(16)])
        a("s_nop 1", pv(0, 0, 0, 0), pv(0, 1, 0, 0),
          f"v_add_u32 v{V_KA}, 4096, v{V_KA}", f"v_add_u32 v{V_VA}, 4096, v{V_VA}", f"v_add_u32 v{V_VA+1}, 4096, v{V_VA+1}",
          "s_nop 15", f"s_sub_u32 s{S_G}, s{S_G}, 1", f"s_cmp_lg_u32 s{S_G}, 0", "s_cbranch_scc1 L_slow_tile")
        a("s_barrier", f"s_add_u32 s{S_GV}, s{S_GV}, 14336", f"s_sub_u32 s{S_CNT}, s{S_CNT}, 1", f"s_cmp_lg_u32 s{S_CNT}, 0",
          "s_cbranch_scc1 L_slow_group")
        if self.o.ldsout:
            a(f"v_mov_b32 v{V_VA}, v{V_XW}", f"v_add_u32 v{V_KA}, s{S_L0}, v{V_OUT}")
        self.finalize(VO)
        a("s_endpgm")

    def build(self):
        a, o = self.a, self.o
        n = "standalone__qk_norm__prompt_kernel"
        a('.amdgcn_target "amdgcn-amd-amdhsa--gfx950"', ".text", f".globl {n}", ".p2align 8", f".type {n},@function", f"{n}:")
        self.prologue()
        self.stage("first", 0)
        self.stamp()
        a(f".p2align {o.align}", "L_loop:")
        self.stage("mid", 1, poll=True)
        self.stage("mid", 0, close=True)
        a("s_cbranch_scc1 L_loop")
        self.stamp()
        self.stage("last", 1)
        self.stamp()
        self.epilogue()
        self.stamp(True)
        if o.stamps:
            a("s_waitcnt vmcnt(0)")
        self.stamp()
        self.stamp_flush()
        a("L_end:", "s_endpgm")
        self.slow()
        kd = f""".section .rodata,"a"
.p2align 6
.amdhsa_kernel {n}
  .amdhsa_next_free_vgpr {NV}
  .amdhsa_next_free_sgpr {102 if o.stamps else 72}
  .amdhsa_accum_offset {(NV + 3) // 4 * 4}
  .amdhsa_group_segment_fixed_size 0
  .amdhsa_kernarg_size 56
  .amdhsa_user_sgpr_count 2
  .amdhsa_user_sgpr_kernarg_segment_ptr 1
  .amdhsa_system_sgpr_workgroup_id_x 1
.end_amdhsa_kernel
"""
        return HEADER + a.text() + kd


def parser():
    tup = lambda s: tuple(map(int, s.split(","))) if s != "none" else None
    ap = argparse.ArgumentParser()
    ap.add_argument("out")
    ap.add_argument("--stamps", action="store_true")
    ap.add_argument("--fine", type=int, default=0)
    ap.add_argument("--poll_p", type=int, default=4)
    ap.add_argument("--vm_pos", type=tup, default=(3, 4, 5))
    sched = lambda x: [(e.split(":")[0], int(e.split(":")[1]), int(e.split(":")[2])) for e in x.split(",") if e]
    ap.add_argument("--kbin", type=int, default=1)
    ap.add_argument("--pubbar", type=int, default=1)
    ap.add_argument("--directst", type=int, default=1)
    ap.add_argument("--st_s", type=int, default=2)
    ap.add_argument("--align", type=int, default=6)
    ap.add_argument("--stfl", type=lambda x: x.replace("_", " "), default="sc1")
    ap.add_argument("--b_p", type=int, default=2)
    ap.add_argument("--kb_pos", type=tup, default=(0, 1))
    ap.add_argument("--vpos", type=int, default=1)
    ap.add_argument("--yprio", type=int, default=1)
    ap.add_argument("--qgap", type=int, default=26)
    ap.add_argument("--ks", type=int, default=3)
    ap.add_argument("--vs", type=tup, default=(2, 3))
    ap.add_argument("--ds", type=tup, default=(1, 2))
    ap.add_argument("--bs", type=int, default=2)
    ap.add_argument("--fill", type=int, default=0)
    ap.add_argument("--mu", type=int, default=0)
    ap.add_argument("--forceabort", action="store_true")
    ap.add_argument("--ks0", type=int, default=2)
    ap.add_argument("--kownpos", type=int, default=2)
    ap.add_argument("--p0", type=sched, default=sched("b:-1:1,o:2:0,y:4:0,y:6:1,y:7:0,y:8:1,y:11:0,y:13:1"))
    ap.add_argument("--pm", type=sched, default=sched("y:10:0,y:13:1"))
    ap.add_argument("--p7", type=sched, default=sched("y:11:0"))
    ap.add_argument("--own_p", type=int, default=0)
    ap.add_argument("--c_p", type=int, default=8)
    ap.add_argument("--pub_p", type=int, default=8)
    ap.add_argument("--xbar", type=tup, default=(14, 2))
    ap.add_argument("--outfl", default="sc1")
    ap.add_argument("--tail", type=int, default=2)
    ap.add_argument("--ldsout", type=int, default=1)
    ap.add_argument("--split", type=int, default=0)
    ap.add_argument("--s0", type=lambda x: (x.split(":")[0], tup(x.split(":")[1])), default=None)
    return ap


def generate(argv):
    o = parser().parse_args(argv)
    g = Gen(o)
    open(o.out, "w").write(g.build())
    return g.nst


if __name__ == "__main__":
    import sys
    print("stamps:", generate(sys.argv[1:]))
```

```python
import argparse

HEADER = """; Kernarg layout for this problem (56 bytes, ptrs only, base s[0:1]):
;   offset   0: d_in[0] q  shape=(1, 16, 4096, 28) dtype=bfloat16 strides=(3670016, 229376, 56, 2) contiguous=True
;   offset   8: d_in[1] k  shape=(1, 16, 4096, 28) dtype=bfloat16 strides=(3670016, 229376, 56, 2) contiguous=True
;   offset  16: d_in[2] v  shape=(1, 16, 4096, 28) dtype=bfloat16 strides=(3670016, 229376, 56, 2) contiguous=True
;   offset  24: d_in[3] t  shape=(16,) dtype=bfloat16 strides=(2,) contiguous=True
; @launch grid=(256,1,1) block=(512,1,1) lds=163840
;
; Fast path: subtracts the Cauchy-Schwarz bound |t|*log2(e) of the row maximum, taken only when |t| <= 20.75.
"""

HEAD_BYTES = 4096 * 56
WSK_HEAD = 128 * 2048
LOG2E = 0x3FB8AA3B
EPS = 0x358637BD
T_LIMIT = 0x41A6
BUF0, QAREA = 0x10000, 0x20000
ABORT_WORD, COUNT_WORD = 3852, 3860
SPIN_LIMIT = 1 << 16

V_LANE, V_T, V_ROW, V_L16, V_KA, V_OUT, V_T2, V_IDX = 0, 1, 2, 3, 4, 5, 6, 7
V_VA = 8
V_XW = 10
V_T3, V_T4 = 14, 15
VQ, VO, VS, VK, VV = 16, 48, 112, 176, 192
VR, VRT = 208, 232
V_FW = 240
V_FW1 = 241
V_KB = 242
V_NT = 246
V_ID = 248
V_KA1 = 250
V_DUM = 253
NV = 254

S_Q, S_K, S_V, S_O, S_W, S_D = 20, 24, 28, 32, 36, 40
S_HEAD, S_C, S_WV, S_KS, S_QG = 44, 45, 46, 47, 48
S_G, S_GK, S_GV, S_L0, S_N0, S_CNT, S_WK, S_WVV = 49, 50, 51, 52, 53, 54, 55, 56
S_TB, S_SC, S_ABORT, S_QOFF, S_N1 = 57, 58, 59, 60, 61
S_CM, S_CH = 18, 19
S_M48 = 62
S_T = 64
S_ST = 72


class Asm:
    def __init__(self):
        self.lines = []
        self.n = 0

    def __call__(self, *ls):
        for l in ls:
            self.lines.append(l if l.endswith(":") or l.startswith(".") else "    " + l)

    def label(self, base):
        self.n += 1
        return f"{base}_{self.n}"

    def text(self):
        return "\n".join(self.lines) + "\n"


def vr(b, n): return f"v[{b}:{b+n-1}]"
def sr(b): return f"s[{b}:{b+3}]"
def S(t, o=0, n=16): return vr(VS + 16 * (t % 4) + o, n)
def K(u, f): return vr(VK + 8 * (u % 2) + 4 * f, 4)
def V(u, f): return vr(VV + 8 * (u % 2) + 4 * f, 4)
def Vh(u, f, h): return vr(VV + 8 * (u % 2) + 4 * f + 2 * h, 2)
def Q(b, f): return vr(VQ + 8 * b + 4 * f, 4)
def O(b): return vr(VO + 16 * b, 16)
def qk(t, f, u, b): return f"v_mfma_f32_32x32x16_bf16 {S(t)}, {K(u,f)}, {Q(b,f)}, {S(t) if f else 0}"
def pv(t, f, u, b): return f"v_smfmac_f32_32x32x32_bf16 {O(b)}, {V(u,f)}, {S(t,8*f,8)}, v{V_IDX}"
def rdk(u, f, b=0): return f"ds_read_b128 {K(u,f)}, v{V_KA1 if b else V_KA} offset:{(u%4)*16384+1024*f}"
def rdv(u, f, h, b=0): return f"ds_read_b64_tr_b16 {Vh(u,f,h)}, v{(V_KA1+1 if b else V_VA)+f} offset:{(u%4)*16384+224*h}"
def rdk_abs(u, f, n): return f"ds_read_b128 {K(u,f)}, v{V_KB} offset:{n*4096+1024*f}"
def rdv_abs(u, f, h, n): return f"ds_read_b64_tr_b16 {Vh(u,f,h)}, v{V_KB+1+f} offset:{n*4096+224*h}"


def resolve(stream, pending):
    out, q = [], list(pending)
    for x in stream:
        if isinstance(x, tuple) and x[0] == "need":
            idx = [i for i, t in enumerate(q) if t in x[1]]
            if idx:
                q = q[max(idx) + 1:]
                assert len(q) <= 15
                out.append(f"s_waitcnt lgkmcnt({len(q)})")
            continue
        text, tag = (x[1], x[2]) if isinstance(x, tuple) else (x, None)
        if text.startswith("ds_"):
            q.append(tag)
        elif "lgkmcnt(" in text:
            n = int(text.split("lgkmcnt(")[1].split(")")[0])
            q = q[len(q) - n:] if n and len(q) > n else ([] if n == 0 else q)
        out.append(text)
    return out, q
def ex(t, r): return f"v_exp_f32 v{VS+16*(t%4)+r}, v{VS+16*(t%4)+r}"
def ld4(R, srd, so): return f"buffer_load_dwordx4 {vr(R,4)}, v{V_ROW}, {sr(srd)}, s{so} offen"
def ld3(R, srd, so): return f"buffer_load_dwordx3 {vr(R+4,3)}, v{V_ROW}, {sr(srd)}, s{so} offen offset:16"
def dk(so, j): return [f"buffer_load_dwordx4 v{V_L16}, {sr(S_W)}, s{so} offen offset:{1024*j} sc1 lds"]
def dv(so, j):
    ins = f"buffer_load_dwordx4 v{V_L16}, {sr(S_V)}, s{so} offen offset:{1024*j} lds"
    return [f"s_mov_b64 exec, s[{S_M48}:{S_M48+1}]", ins, "s_mov_b64 exec, -1"] if j else [ins]
def wfrag(addr, R, off): return [f"ds_write_b128 v{addr}, {vr(R,4)} offset:{off}", f"ds_write_b128 v{addr}, {vr(R+4,4)} offset:{off+1024}"]
FLAGLOAD = f"buffer_load_dwordx4 {vr(V_XW,4)}, off, {sr(S_D)}, 0 sc1"


def norm_chunks(R, U, T, s_scale=None):
    un = lambda g, i: f"v_mfma_f32_4x4x4_16b_bf16 {vr(U+4*g,4)}, {vr(V_ID,2)}, {vr(R+i,2)}, 0"
    dot = lambda i: f"v_dot2_f32_bf16 v{T+i%2}, v{R+i}, v{R+i}, {f'v{T+i%2}' if i > 1 else 0}"
    mul = lambda p: f"v_pk_mul_f32 {vr(U+p,2)}, {vr(U+p,2)}, {vr(T,2)} op_sel_hi:[1,0]"
    cvt = lambda i, p: f"v_cvt_pk_bf16_f32 v{R+i}, v{U+p}, v{U+p+1}"
    grp = lambda g, i: [mul(4 * g), mul(4 * g + 2), cvt(i, 4 * g), cvt(i + 1, 4 * g + 2)]
    scale = [f"v_mul_f32 v{T}, s{s_scale}, v{T}"] if s_scale is not None else []
    return [(0, [un(0, 0), dot(0), dot(1), un(1, 2)] + [dot(i) for i in range(2, 7)]),
            (3, [f"v_add_f32 v{T}, v{T}, v{T+1}"]),
            (2, [f"v_add_f32_dpp v{T}, v{T}, v{T} quad_perm:[1,0,3,2] row_mask:0xf bank_mask:0xf", f"v_sqrt_f32 v{T}, v{T}"]),
            (1, [f"v_add_f32 v{T}, {hex(EPS)}, v{T}", f"v_rcp_f32 v{T}, v{T}"]),
            (1, scale + grp(0, 0) + [un(0, 4)] + grp(1, 2) + [un(1, 6)]),
            (0, grp(0, 4) + ["s_nop 0", mul(4), cvt(6, 4)])]


def norm_chunks_valu(R, U, T, s_scale=None):
    un = lambda i: [f"v_lshlrev_b32 v{U+2*(i%3)}, 16, v{R+i}", f"v_and_b32 v{U+2*(i%3)+1}, 0xffff0000, v{R+i}"]
    dot = lambda i: f"v_dot2_f32_bf16 v{T+i%2}, v{R+i}, v{R+i}, {f'v{T+i%2}' if i > 1 else 0}"
    one = lambda i: (un(i + 2) if i + 2 < 7 else []) + [
        f"v_pk_mul_f32 {vr(U+2*(i%3),2)}, {vr(U+2*(i%3),2)}, {vr(T,2)} op_sel_hi:[1,0]",
        f"v_cvt_pk_bf16_f32 v{R+i}, v{U+2*(i%3)}, v{U+2*(i%3)+1}"]
    scale = [f"v_mul_f32 v{T}, s{s_scale}, v{T}"] if s_scale is not None else []
    return [(0, [dot(i) for i in range(7)]),
            (3, [f"v_add_f32 v{T}, v{T}, v{T+1}"] + un(0)
             + [f"v_add_f32_dpp v{T}, v{T}, v{T} quad_perm:[1,0,3,2] row_mask:0xf bank_mask:0xf",
                f"v_sqrt_f32 v{T}, v{T}", un(1)[0], f"v_add_f32 v{T}, {hex(EPS)}, v{T}", f"v_rcp_f32 v{T}, v{T}", un(1)[1]]),
            (0, []), (0, scale + one(0) + one(1)), (0, one(2) + one(3)), (0, one(4) + one(5) + one(6))]


class Gen:
    def __init__(self, o):
        self.o = o
        self.a = Asm()
        self.nst = 0

    def stamp(self, fine=False):
        if self.o.stamps and self.o.fine == 2 and self.nst < 9:
            self.a(f"s_memtime s[{S_ST+2*self.nst}:{S_ST+2*self.nst+1}]")
            self.nst += 1
        elif self.o.stamps and (self.o.fine or not fine):
            j = self.nst
            self.a("s_memtime s[100:101]", "s_memrealtime s[98:99]", "s_waitcnt lgkmcnt(0)",
                   f"s_mov_b32 s{S_ST+2*j}, s100", f"s_mov_b32 s{S_ST+2*j+1}, s98")
            self.nst += 1

    def stamp_list(self):
        j = self.nst
        self.nst += 1
        return ["s_memtime s[100:101]", "s_memrealtime s[98:99]", "s_waitcnt lgkmcnt(0)",
                f"s_mov_b32 s{S_ST+2*j}, s100", f"s_mov_b32 s{S_ST+2*j+1}, s98"]

    def stamp_flush(self):
        if not self.o.stamps:
            return
        a, n = self.a, self.nst
        if self.o.probe:
            i, j, k, allwg = self.o.probe
            if not allwg:
                a("s_cmp_lg_u32 s2, 0", "s_cbranch_scc1 L_end")
            a(f"s_cmp_lg_u32 s{S_WV}, 0", "s_cbranch_scc1 L_end",
              f"s_sub_u32 s4, s{S_ST+1+2*j}, s{S_ST+1+2*i}", f"s_mul_i32 s4, s4, {k}", "s_min_u32 s4, s4, 20000",
              "L_probe:", "s_memrealtime s[6:7]", "s_waitcnt lgkmcnt(0)", f"s_sub_u32 s6, s6, s{S_ST+1+2*(n-1)}",
              "s_cmp_lt_u32 s6, s4", "s_cbranch_scc1 L_probe")
            return
        a("s_add_u32 s4, s16, 0x4000000", "s_addc_u32 s5, s17, 0", "s_mov_b32 s6, 0x100000", "s_mov_b32 s7, 0x00020000",
          "s_lshl_b32 s8, s2, 3", f"s_add_u32 s8, s8, s{S_WV}", f"s_mul_i32 s8, s8, {8*n}", "v_mov_b32 v1, 0", "s_mov_b64 exec, 1")
        for j in range(n):
            a(f"v_mov_b32 v14, s{S_ST+2*j}", f"v_mov_b32 v15, s{S_ST+2*j+1}",
              f"buffer_store_dwordx2 v[14:15], v1, s[4:7], s8 offen offset:{8*j}", "s_nop 1")

    def srd(self, d, base, s_off, nbytes):
        self.a(f"s_add_u32 s{d}, s{base}, s{s_off}", f"s_addc_u32 s{d+1}, s{base+1}, 0",
               f"s_mov_b32 s{d+2}, {nbytes}", f"s_mov_b32 s{d+3}, 0x00020000")

    def normalize(self, *job, write=None):
        chunks = (norm_chunks if self.o.mu & 1 else norm_chunks_valu)(*job)
        early = write and self.o.earlyw
        for k, (gap, c) in enumerate(chunks):
            if early and k == len(chunks) - 1:
                self.a(write[0])
            self.a(*([f"s_nop {gap - 1}"] if gap else []), *c)
        if write:
            self.a(*write[1 if early else 0:])

    def tr_addresses(self, dst):
        a, t, u = self.a, V_T, V_T2
        a(f"v_lshrrev_b32 v{t}, 5, v0", f"v_mul_u32_u24 v{dst}, 448, v{t}",
          f"v_bfe_u32 v{t}, v0, 2, 2", f"v_mad_u32_u24 v{dst}, v{t}, 56, v{dst}",
          f"v_and_b32 v{t}, 1, v0", f"v_lshl_add_u32 v{dst}, v{t}, 5, v{dst}",
          f"v_bfe_u32 v{t}, v0, 4, 1", f"v_lshl_add_u32 v{dst}, v{t}, 4, v{dst}",
          f"v_bfe_u32 v{t}, v0, 1, 1", f"v_lshl_add_u32 v{dst}, v{t}, 3, v{dst}",
          f"v_and_b32 v{t}, 19, v0", f"v_cmp_eq_u32 vcc, 19, v{t}",
          f"v_add_u32 v{dst+1}, {2048+896}, v{dst}", f"v_add_u32 v{dst}, 2048, v{dst}", f"v_mov_b32 v{u}, 3840",
          f"v_cndmask_b32 v{dst}, v{dst}, v{u}, vcc", f"v_cndmask_b32 v{dst+1}, v{dst+1}, v{u}, vcc")

    def finalize(self, R, X=None):
        a, fl = self.a, self.o.outfl
        add = lambda i: [f"v_pk_add_f32 {vr(R+2*i,2)}, {vr(R+2*i,2)}, {vr(X+2*i,2)}"] if X is not None else ["s_nop 0"]
        a(*add(6), f"v_mov_b32 v{V_T3}, v{R+12}", f"v_mov_b32 v{V_T4}, v{R+12}", *add(0), *add(1),
          f"v_permlane32_swap_b32 v{V_T3}, v{V_T4}", *add(2), f"v_rcp_f32 v{V_T4}, v{V_T4}", *add(3))
        for i in range(8):
            if X is not None and i in (4, 5, 7):
                a(*add(i))
            a(f"v_pk_mul_f32 {vr(R+2*i,2)}, {vr(R+2*i,2)}, {vr(V_T3,2)} op_sel:[0,1] op_sel_hi:[1,1]",
              f"v_cvt_pk_bf16_f32 v{R+i}, v{R+2*i}, v{R+2*i+1}")
            if self.o.ldsout:
                if i in (1, 3, 5):
                    a(f"ds_write_b64 v{V_KA}, {vr(R+i-1,2)} offset:{4*(i-1)}")
                continue
            if i == 3:
                a(f"buffer_store_dwordx4 {vr(R,4)}, v{V_OUT}, {sr(S_O)}, s{S_QOFF} offen {fl}")
            if i == 5:
                a(f"buffer_store_dwordx2 {vr(R+4,2)}, v{V_OUT}, {sr(S_O)}, s{S_QOFF} offen offset:16 {fl}")
        if self.o.ldsout:
            a("s_mov_b32 exec_hi, 0", f"ds_write_b64 v{V_KA}, {vr(R+6,2)} offset:24", "s_mov_b32 exec_hi, -1",
              f"ds_read_b128 {vr(R+8,4)}, v{V_VA}", f"ds_read_b128 {vr(R+12,4)}, v{V_VA} offset:1024", "s_waitcnt lgkmcnt(1)",
              f"buffer_store_dwordx4 {vr(R+8,4)}, v{V_L16}, {sr(S_O)}, s{S_QOFF} offen {fl}",
              f"s_mov_b64 exec, s[{S_M48}:{S_M48+1}]", "s_waitcnt lgkmcnt(0)",
              f"buffer_store_dwordx4 {vr(R+12,4)}, v{V_L16}, {sr(S_O)}, s{S_QOFF} offen offset:1024 {fl}",
              "s_mov_b64 exec, -1")
            return
        a("s_mov_b32 exec_hi, 0",
          f"buffer_store_dwordx2 {vr(R+6,2)}, v{V_OUT}, {sr(S_O)}, s{S_QOFF} offen offset:24 {fl}",
          "s_mov_b32 exec_hi, -1")

    def prio(self, n, role="y"):
        if role == "b":
            return [f"s_setprio {n}"]
        l = self.a.label("L_prio")
        return [f"s_cbranch_{'vccnz' if role == 'y' else 'vccz'} {l}", f"s_setprio {n}", f"{l}:"]

    def poll_block(self):
        return [f"s_cmp_lg_u32 s{S_CNT}, 3", "s_cbranch_scc1 L_polled", f"s_mov_b32 s{S_T}, 0",
                "L_poll:", "s_waitcnt vmcnt(0)",
                f"v_and_b32 v{V_XW}, v{V_XW}, v{V_XW+1}", f"v_and_b32 v{V_XW+2}, v{V_XW+2}, v{V_XW+3}",
                f"v_and_b32 v{V_XW}, v{V_XW}, v{V_XW+2}", f"s_add_u32 s{S_T}, s{S_T}, 1",
                f"v_readfirstlane_b32 s{S_T+1}, v{V_XW}",
                *([f"s_cmp_eq_u32 s{S_WV}, 5", f"s_cselect_b32 s{S_T+1}, 0, s{S_T+1}"] if self.o.forceabort else []),
                f"s_cmp_eq_u32 s{S_T+1}, 0xdddddddd", "s_cbranch_scc1 L_ready",
                FLAGLOAD, f"s_cmp_lt_u32 s{S_T}, {64 if self.o.forceabort else SPIN_LIMIT}", "s_cbranch_scc1 L_poll",
                "s_waitcnt vmcnt(0)", f"s_mov_b32 s{S_ABORT}, 1", "L_ready:",
                *(["s_barrier"] if self.o.latev else []), "L_polled:"]

    def stage(self, kind, par, poll=False, close=False):
        a, o = self.a, self.o
        sh = {(p, s): [] for p in range(16) for s in range(4)}
        post = {(p, s): [] for p in range(16) for s in range(4)}
        last, first, mid = kind == "last", kind == "first", kind == "mid"
        t0 = 16 - 4 * o.tail if last else 99
        unit = lambda t: (t // 4, t % 4) if t < t0 else (t0 // 4 + t - t0, 3)
        mf = {}
        for p in range(16):
            for f in range(2):
                mf[(p, f)] = qk(p + 1, f, *unit(p + 1))
                mf[(p, 2 + f)] = pv(p - 1, f, *unit(p - 1))
        if first:
            mf[(0, 2)] = mf[(0, 3)] = None
        if last:
            mf[(15, 0)], mf[(15, 1)], mf[(15, 2)], mf[(15, 3)] = mf[(15, 2)], mf[(15, 3)], None, None
        nvm = 0

        if not last:
            sh[(12, o.bs)] += ["s_waitcnt vmcnt(0) lgkmcnt(0)", "s_barrier"]
        if mid and close and o.touch2:
            sh[(9, 1)] += [f"buffer_load_dword v{V_DUM}, off, {sr(S_O)}, s{S_QOFF}"]
        if mid:
            if close:
                sh[(15, 3)] += [f"s_sub_u32 s{S_CNT}, s{S_CNT}, 1", f"s_cmp_lg_u32 s{S_CNT}, 0"]
            if poll:
                l = a.label("L_fl")
                sh[(o.poll_p - 2, 2)] += [f"s_cmp_lg_u32 s{S_CNT}, 3", f"s_cbranch_scc1 {l}", FLAGLOAD, f"{l}:"]
                sh[(o.poll_p, 0)] += self.poll_block()
            for g in range(4):
                half, part, p = g // 2, g % 2, o.poll_p + g
                sh[(p, 0)] += [f"s_add_u32 m0, s{S_L0}, {par*BUF0 + half*32768 + part*2048}"]
                if part == 0:
                    sh[(p - 2, 3)] += [f"s_cmp_ge_u32 s{S_G}, s{S_CM}", f"s_addc_u32 s{S_CH}, s{S_G}, 0"]
                    sh[(p - 1, 0)] += [f"s_add_u32 s{S_G}, s{S_G}, 1"]
                    sh[(p - 1, 3)] += [f"s_lshl_b32 s{S_GK}, s{S_CH}, 14", f"s_add_u32 s{S_GK}, s{S_GK}, s{S_WK}"]
                else:
                    sh[(p - 1, 3)] += [f"s_mul_i32 s{S_GV}, s{S_CH}, 14336", f"s_add_u32 s{S_GV}, s{S_GV}, s{S_WVV}"]
                for j in range(2):
                    sh[(p, o.ds[j])] += dv(S_GV, j) if part else dk(S_GK, j)
        for role, p, n in (o.p0 if first else o.p7 if last else o.pm + (o.p1 if poll else [])):
            if p >= 0:
                sh[(p, 1)] += self.prio(n, role)

        for p in range(16):
            u, jj = p // 4 + 1, p % 4
            if jj == 1 and 4 * (u - 1) < t0:
                sh[(p, 1)].append(("need", [f"V{u-1}"]))
            late = first and o.kbin and u == 2
            if 4 * u >= t0 or (late and jj < 2):
                continue
            if jj == 2 and not late:
                sh[(p, o.vs[0])].append(("need", [f"K{u}"]))
            b = par ^ (u == 4)
            if jj < 2:
                sh[(p, (o.ks0 if first else o.ks) if p != 12 else 3)].append(("ds", rdk(u, jj, b), f"K{u}"))
            else:
                sh[(p, o.vs[0])].append(("ds", rdv(u, jj - 2, 0, b), f"V{u}"))
                sh[(p, o.vs[1])].append(("ds", rdv(u, jj - 2, 1, b), f"V{u}"))
        if first:
            ev = []
            def spread(R, p0, addr, off, tag):
                c = (norm_chunks if o.mu & 2 else norm_chunks_valu)(R, VRT, V_NT)
                slots = [(p0 + k // 4, k % 4) for k in range(8)]
                pos = [slots[k] for k in (0, 1, 2, 3, 4, 6)]
                post[pos[0]].append(("wait", tag))
                for k in range(6):
                    post[pos[k]] += [x for x in c[k][1] if not x.startswith("s_nop")]
                sh[slots[7]] += wfrag(addr, R, off)
                return slots[7]
            w = spread(VR, o.own_p, V_FW1, 32768, "Kown")
            if o.directst:
                va, st0, st1 = V_T4, (w[0], 1), (w[0], 3)
            else:
                sh[w] += [("ds", f"ds_read_b128 {vr(VR,4)}, v{V_T} offset:32768", "rb"), ("ds", f"ds_read_b128 {vr(VR+4,4)}, v{V_T} offset:33792", "rb")]
                va, st0, st1 = V_L16, (w[0] + 1, o.st_s), (w[0] + 1, o.st_s + 1)
                sh[st0].append(("need", ["rb"]))
            ev.append((st0, [f"buffer_store_dwordx4 {vr(VR,4)}, v{va}, {sr(S_W)}, s{S_GK} offen {o.stfl}"], "st0"))
            ev.append((st1, [f"buffer_store_dwordx4 {vr(VR+4,4)}, v{va}, {sr(S_W)}, s{S_GK} offen offset:1024 {o.stfl}"], "st"))
            if o.kbin:
                spread(VR + 8, o.b_p, V_FW, 32768, "Kb")
            spread(VR + 16, o.c_p, V_FW1, 0, "Kc")
            assert o.kbin and o.directst
            p = o.kb_pos
            ev += [((p[0], 1), [ld4(VR + 8, S_K, S_N0)], "x"), ((p[0], 2), [ld3(VR + 8, S_K, S_N0)], "Kb"),
                   ((p[1], 0), [f"s_add_u32 m0, s{S_L0}, {BUF0 + 32768 + 2048}", "s_nop 0"] + dv(S_N0, 0), "x"),
                   ((p[1], 2 if p[1] == o.own_p + 1 else 1), dv(S_N0, 1), "Vb")]
            p = o.vm_pos
            two = lambda x: ((x // 10, x % 10), (x // 10, x % 10 + 1))
            kc, vc, vo = two(p[0]), two(p[1]), two(p[2])
            ev += [(kc[0], [ld4(VR + 16, S_K, S_N1)], "x"), (kc[1], [ld3(VR + 16, S_K, S_N1)], "Kc"),
                   (vc[0], [f"s_add_u32 m0, s{S_L0}, 2048", "s_nop 0"] + dv(S_N1, 0), "x"), (vc[1], dv(S_N1, 1), "x"),
                   (vo[0], [f"s_add_u32 m0, s{S_L0}, {32768 + 2048}", "s_nop 0"] + dv(S_QOFF, 0), "x"), (vo[1], dv(S_QOFF, 1), "Vo")]
            if o.touch:
                ev.append(((o.touch // 10, o.touch % 10), [f"buffer_load_dword v{V_DUM}, off, {sr(S_O)}, s{S_QOFF}"], "x"))
            ev.sort(key=lambda e: e[0])
            assert len({e[0] for e in ev}) == len(ev)
            for pos, ins, tag in ev:
                sh[pos] += ins
                if o.ackdiag and tag == "st":
                    sh[pos] += self.stamp_list() + ["s_waitcnt vmcnt(0)"] + self.stamp_list()
            order = ["x"] * 7 + ["Kown"] + [e[2] for e in ev]
            def cnt(tag, pos, incl):
                n = 8 + sum(1 for e in ev if e[0] < pos or (incl and e[0] == pos))
                assert order.index(tag) < n
                return n - order.index(tag) - 1
            for pos in post:
                post[pos] = [f"s_waitcnt vmcnt({cnt(x[1], pos, True)})" if isinstance(x, tuple) and x[0] == "wait" else x for x in post[pos]]
            l = a.label("L_pub")
            flag = [f"s_cmp_lg_u32 s{S_WV}, 0", f"s_cbranch_scc1 {l}", "s_mov_b64 exec, 1",
                    f"buffer_store_byte v{V_IDX}, v0, {sr(S_D)}, s{S_C} offen sc1", "s_mov_b64 exec, -1", f"{l}:"]
            n2 = min(cnt(t, (6, 0), False) for t in (("Vb", "st") if o.pub_p == 6 else ("Vb",)))
            sh[(6, 0)] = [f"s_waitcnt vmcnt({n2}) lgkmcnt(0)", "s_barrier",
                          ("ds", rdk(2, 0), "K2"), ("ds", rdk(2, 1), "K2")] + (flag if o.pub_p == 6 else []) + sh[(6, 0)]
            sh[(6, 3)] = [("need", ["K2"])] + sh[(6, 3)]
            if o.latev:
                assert o.pubbar and [e[0] for e in ev[-2:]] == list(vo) and vo[0] > (o.pub_p, 0) and vo[1] < (12, o.bs) and o.poll_p <= 5
                k = sh[(12, o.bs)].index("s_waitcnt vmcnt(0) lgkmcnt(0)")
                sh[(12, o.bs)][k] = "s_waitcnt vmcnt(2) lgkmcnt(0)"
            if o.pubbar and not o.latev and o.skipflag:
                k, lw = sh[(12, o.bs)].index("s_waitcnt vmcnt(0) lgkmcnt(0)"), a.label("L_w0")
                sh[(12, o.bs)][k:k + 1] = ["s_waitcnt vmcnt(1) lgkmcnt(0)", f"s_cmp_eq_u32 s{S_WV}, 0", f"s_cbranch_scc1 {lw}",
                                           "s_waitcnt vmcnt(0)", f"{lw}:"]
            if o.pub_p == 6:
                assert o.pubbar and all(e[0] < (6, 0) for e in ev[:len(ev) - 2 * o.latev])
            elif o.pubbar:
                pub = (o.pub_p, 0)
                sh[pub] = [f"s_waitcnt vmcnt({cnt('st', pub, False)})", "s_barrier",
                           f"s_cmp_lg_u32 s{S_WV}, 0", f"s_cbranch_scc1 {l}", "s_mov_b64 exec, 1",
                           f"buffer_store_byte v{V_IDX}, v0, {sr(S_D)}, s{S_C} offen sc1",
                           "s_mov_b64 exec, -1", f"{l}:"] + (self.stamp_list() if o.polldiag else []) + sh[pub]
                assert all(e[0] < pub for e in ev[:len(ev) - 2 * o.latev])
            if o.pollat:
                pb = [x.replace("L_poll", "L_dpoll").replace("L_ready", "L_dready") for x in self.poll_block()[2:]]
                sh[(o.pollat, 0)] += self.stamp_list() + [FLAGLOAD] + pb + self.stamp_list()
        if first and not o.pubbar:
            pub = (o.pub_p, 2)
            post[(o.pub_p, 1)] += [f"v_mov_b32 v{V_T}, {COUNT_WORD}", f"v_mov_b32 v{V_T2}, 1"]
            sh[pub] = [f"s_waitcnt vmcnt({cnt('st', pub, False)})", "s_mov_b64 exec, 1",
                       ("ds", f"ds_add_rtn_u32 v{V_T2}, v{V_T}, v{V_T2}", "cnt"), "s_mov_b64 exec, -1"] + sh[pub]
            post[(o.pub_p + 1, 0)] += [("need", ["cnt"]), f"v_readfirstlane_b32 s{S_T}, v{V_T2}"]
            sh[(o.pub_p + 1, 2)] = [f"s_cmp_lg_u32 s{S_T}, 7", f"s_cbranch_scc1 {l}", "s_mov_b64 exec, 1",
                                    f"buffer_store_byte v{V_IDX}, v0, {sr(S_D)}, s{S_C} offen sc1",
                                    "s_mov_b64 exec, -1", f"{l}:"] + sh[(o.pub_p + 1, 2)]
            assert all(e[0] < pub for e in ev) and o.pub_p > o.own_p + 2
            if o.pub_p >= 12:
                assert [e[2] for e in ev[-2:]] == ["st0", "st"] and sh[(12, 2)][0 if o.pub_p > 12 else 4].startswith("s_waitcnt vmcnt(0)")
                sh[(12, 2)][0 if o.pub_p > 12 else 4] = "s_waitcnt vmcnt(2) lgkmcnt(0)"
        if last:
            T = S_T
            sh[(0, 0)] += [f"s_lshl_b32 s{T+4}, s{S_QG}, 2"]
            for j in range(4):
                sh[(j, 1)] += [f"s_add_u32 s{T}, s{S_KS}, {1+j}"]
                sh[(j, 2)] += [f"s_and_b32 s{T}, s{T}, 3", f"s_add_u32 s{T}, s{T}, s{T+4}"]
                sh[(j, 3)] = [f"s_mul_i32 s{T}, s{T}, 12288", f"s_add_u32 s{T}, s{T}, {BUF0 + 4096 * (j % 3 if j < 3 else 0)}"] + sh[(j, 3)]
                post[(j, 3)] += [f"v_add_u32 v{V_XW+j}, s{T}, v{V_L16}"]
            for t in range(t0, 16):
                U, n = unit(t)[0], t
                for f in range(2):
                    sh[(t - 2, f)].append(("ds", rdk_abs(U, f, n), f"K{U}"))
                    vp = (t, f) if t > t0 else (t - 1, f)
                    sh[vp] += [("ds", rdv_abs(U, f, h, n), f"V{U}") for h in range(2)]
                sh[(t - 2, 3)].insert(0, ("need", [f"K{U}"]))
                if t < 14:
                    sh[(t + 1, 1)].insert(0, ("need", [f"V{U}"]))
            slots = [(p, s) for p in range(t0 - 2, 15) for s in (2, 3) if (t0 - 2, 2) <= (p, s) < o.xbar]
            items = [(j, g) for j in range(3) for g in range(4)]
            per = -(-len(items) // len(slots))
            k = 0
            for pos in slots:
                for _ in range(per):
                    if k < len(items) and pos >= (t0 - 2 + items[k][0], 2):
                        j, g = items[k]
                        sh[pos].append(f"ds_write_b128 v{V_XW+j}, {vr(VO+16*j+4*g,4)} offset:{1024*g}")
                        k += 1
            assert k == len(items)
            xr = lambda j: [("ds", f"ds_read_b128 {vr(VO+16*j+4*g,4)}, v{V_XW+3} offset:{4096*j+1024*g}", f"X{j}") for g in range(4)]
            post[(4, 3)] += [f"v_mov_b32 v{V_T}, {ABORT_WORD}"]
            sh[o.xbar] += [f"s_cmp_eq_u32 s{S_ABORT}, 0", "s_cbranch_scc1 L_noabort", f"ds_write_b32 v{V_T}, v{V_IDX}",
                           "L_noabort:", "s_waitcnt lgkmcnt(0)", "s_barrier",
                           ("ds", f"ds_read_b32 v{V_T2}, v{V_T}", "AB")] + xr(0) + xr(1)
            post[(14, 3)].append(("need", [f"V{unit(14)[0]}"]))
            post[(15, 1)] += [("need", ["X0"])] + xr(2)
            post[(15, 3)].append(("need", [f"V{unit(15)[0]}", "AB", "X1"]))

        stream = []
        for p in range(16):
            for s in range(4):
                if mf[(p, s)]:
                    stream.append(mf[(p, s)])
                stream += sh[(p, s)] + [ex(p, 4 * s + r) for r in range(4)] + post[(p, s)]
                if o.s0 and kind == o.s0[0] and s == 3 and p in o.s0[1]:
                    stream += self.stamp_list()
        if first and o.fill:
            stream.insert(stream.index(mf[(0, 1)]) + 1, ("need", ["Q"]))
        out, q = resolve(stream, (["Q"] * 4 if first and o.fill else []) + ["V0"] * 4)
        assert last or q == ["V4"] * len(q) and len(q) <= 4, q
        a(*out)
        self.last_unit = unit(15)[0]

    def deferred_scalars(self):
        T = S_T
        base = lambda d, b, off: [[f"s_add_u32 s{d}, s{b}, s{off}", f"s_addc_u32 s{d+1}, s{b+1}, 0"]]
        return (base(S_W, 16, T + 1) + [[f"s_lshl_b32 s{S_GK}, s{S_C}, 14", f"s_add_u32 s{S_GK}, s{S_GK}, s{S_WK}"]]
                + base(S_D, 14, T + 2) + base(S_O, 12, T)
                + [[f"s_max_u32 s{S_CM}, s{S_C}, 3", f"s_mov_b32 s{S_G}, 3"], [f"s_mov_b32 s{S_ABORT}, 0", f"s_mov_b32 s{S_CNT}, 3"]])

    def prologue(self):
        a, o = self.a, self.o
        T = S_T
        a("s_cmp_ge_u32 s2, 256", "s_cbranch_scc1 L_end")
        self.stamp()
        a("s_load_dwordx8 s[4:11], s[0:1], 0", "s_load_dwordx4 s[12:15], s[0:1], 32", "s_load_dwordx2 s[16:17], s[0:1], 48")
        a(f"v_lshrrev_b32 v{V_T}, 6, v0", "v_and_b32 v0, 63, v0", f"v_readfirstlane_b32 s{S_WV}, v{V_T}",
          f"s_and_b32 s{S_HEAD}, s2, 7", f"s_lshl_b32 s{S_HEAD}, s{S_HEAD}, 1", f"s_lshr_b32 s{T}, s2, 7",
          f"s_add_u32 s{S_HEAD}, s{S_HEAD}, s{T}", f"s_bfe_u32 s{S_C}, s2, 0x40003",
          f"v_mul_u32_u24 v{V_ROW}, 28, v0", f"v_lshlrev_b32 v{V_L16}, 4, v0",
          f"s_mul_i32 s{T}, s{S_HEAD}, {HEAD_BYTES}", f"s_mul_i32 s{S_WVV}, s{S_WV}, 1792",
          f"s_mul_i32 s{S_QOFF}, s{S_C}, 14336", f"s_add_u32 s{S_QOFF}, s{S_QOFF}, s{S_WVV}",
          f"s_cmp_eq_u32 s{S_C}, 0", f"s_cselect_b32 s{S_GV}, 14336, 0", f"s_add_u32 s{S_GV}, s{S_GV}, s{S_WVV}",
          f"s_and_b32 s{T+3}, s{S_HEAD}, 14", f"s_lshl_b32 s{T+3}, s{T+3}, 1")
        for d in (S_K, S_Q, S_V):
            a(f"s_mov_b32 s{d+2}, {HEAD_BYTES}", f"s_mov_b32 s{d+3}, 0x00020000")
        a(f"s_lshl_b32 s{S_L0}, s{S_WV}, 12", f"s_lshl_b32 s{S_WK}, s{S_WV}, 11",
          f"s_and_b32 s{S_KS}, s{S_WV}, 3", f"s_lshr_b32 s{S_QG}, s{S_WV}, 2")
        zero = lambda b: f"v_mfma_f32_32x32x16_bf16 {O(b)}, {vr(VV,4)}, {vr(VV,4)}, 0"
        rec = Asm()
        self.a, keep = rec, self.a
        rec(*[f"v_mov_b32 v{VV+i}, 0" for i in range(4)])
        if o.mu:
          rec(f"v_and_b32 v{V_T}, 2, v0", f"v_cmp_eq_u32 vcc, 0, v{V_T}", f"v_and_b32 v{V_T}, 16, v{V_L16}",
            f"v_mov_b32 v{V_T2}, 0x3f80", f"v_lshlrev_b32 v{V_T}, v{V_T}, v{V_T2}",
            f"v_cndmask_b32 v{V_ID}, 0, v{V_T}, vcc", f"v_sub_u32 v{V_ID+1}, v{V_T}, v{V_ID}")
        rec(f"v_mov_b32 v{VK}, 0x3f80", f"v_mov_b32 v{VK+1}, 0", f"v_mov_b32 v{VK+2}, 0x3f80", f"v_mov_b32 v{VK+3}, 0",
            zero(0), f"s_add_u32 m0, s{S_L0}, {BUF0 + 2048}",
            f"v_lshlrev_b32 v{V_T}, 11, v0", f"v_and_b32 v{V_T}, 0x18000, v{V_T}",
            f"v_and_b32 v{V_T2}, 0xf0, v{V_L16}", f"v_add3_u32 v{V_T}, v{V_T}, v{V_T2}, s{S_L0}",
            f"ds_write_b128 v{V_T}, {vr(VK,4)} offset:3840",
            zero(1), f"s_add_u32 s{T+5}, s{S_WK}, {QAREA}",
            f"v_and_b32 v{V_T}, 1, v0", f"v_lshlrev_b32 v{V_T}, 9, v{V_T}", f"v_lshrrev_b32 v{V_FW1}, 1, v0",
            f"v_lshl_add_u32 v{V_T4}, v{V_FW1}, 4, v{V_T}", f"v_add_u32 v{V_FW1}, s{S_L0}, v{V_T4}",
            f"v_add_u32 v{V_FW}, {BUF0}, v{V_FW1}", f"v_add_u32 v{V_T3}, s{T+5}, v{V_T4}",
            zero(2), f"s_mov_b32 s{S_M48}, -1")
        self.tr_addresses(V_KB + 1)
        rec(zero(3), f"s_mov_b32 s{S_M48+1}, 0xffff",
            f"s_lshl_b32 s{T+4}, s{S_KS}, 12", f"s_add_u32 s{T+5}, s{T+4}, {BUF0}",
            f"v_add_u32 v{V_KA}, s{T+5}, v{V_L16}", f"v_add_u32 v{V_VA}, s{T+5}, v{V_KB+1}", f"v_add_u32 v{V_VA+1}, s{T+5}, v{V_KB+2}",
            f"v_add_u32 v{V_KA1}, s{T+4}, v{V_L16}", f"v_add_u32 v{V_KA1+1}, s{T+4}, v{V_KB+1}", f"v_add_u32 v{V_KA1+2}, s{T+4}, v{V_KB+2}",
            f"v_mov_b32 v{V_KB}, v{V_L16}", f"v_mov_b32 v{V_IDX}, 0xdddddddd", f"v_mov_b32 v{VS+7}, 0x3f80",
            f"v_and_b32 v{V_T}, 31, v0", f"v_mul_u32_u24 v{V_T}, 56, v{V_T}", f"v_lshrrev_b32 v{V_T2}, 5, v0",
            f"v_lshl_add_u32 v{V_OUT}, v{V_T2}, 5, v{V_T}", *[f"v_mov_b32 v{VR+8*i+7}, 0x3f80" for i in range(3)])
        rec(f"s_lshl_b32 s{T+5}, s{S_QG}, 13", f"s_add_u32 s{T+5}, s{T+5}, {QAREA}", f"s_lshl_b32 s{T+4}, s{S_KS}, 11",
            f"v_add_u32 v{V_T}, s{T+4}, v{V_L16}")
        for j in range(4):
            rec(f"v_add_u32 v{V_T2}, {2048*(1+j)}, v{V_T}", f"v_and_b32 v{V_T2}, 0x1fff, v{V_T2}", f"v_add_u32 v{V_XW+j}, s{T+5}, v{V_T2}")
        for j, d in ((1, S_N0), (2, S_N1)):
            rec(f"s_cmp_le_u32 s{S_C}, {j}", f"s_cselect_b32 s{d}, {j+1}, {j}", f"s_mul_i32 s{d}, s{d}, 14336",
                f"s_add_u32 s{d}, s{d}, s{S_WVV}")
        rec(f"s_lshl_b32 s{T+1}, s{S_HEAD}, 18", f"s_lshl_b32 s{T+2}, s{S_HEAD}, 4",
            f"s_mov_b32 s{S_W+2}, {WSK_HEAD}", f"s_mov_b32 s{S_D+2}, 16", f"s_mov_b32 s{S_O+2}, {HEAD_BYTES}",
            *[f"s_mov_b32 s{d+3}, 0x00020000" for d in (S_W, S_D, S_O)],
            f"s_cmp_lt_u32 s{S_WV}, 4", "s_cselect_b64 vcc, -1, 0")
        self.a = keep
        setup = [l.strip() for l in rec.lines]
        assert o.split >= len(setup) or not setup[o.split].startswith(("s_cselect", "v_cndmask"))
        a(*setup[:o.split])
        a("s_waitcnt lgkmcnt(0)")
        self.stamp(True)
        base = lambda d, b: [f"s_add_u32 s{d}, s{b}, s{T}", f"s_addc_u32 s{d+1}, s{b+1}, 0"]
        va = [*dv(S_GV, 0), *dv(S_GV, 1)]
        q2 = o.split + o.qgap
        assert q2 >= len(setup) or not setup[q2].startswith(("s_cselect", "v_cndmask"))
        a(*base(S_K, 6), ld4(VS, S_K, S_GV), ld3(VS, S_K, S_GV), f"s_load_dword s{S_TB}, s[10:11], s{T+3}", *setup[o.split:q2],
          *base(S_Q, 4), ld4(VS + 8, S_Q, S_QOFF), ld3(VS + 8, S_Q, S_QOFF), *base(S_V, 8))
        kown = [ld4(VR, S_K, S_QOFF), ld3(VR, S_K, S_QOFF)]
        assert o.vpos == 1 or o.kownpos == 2
        self.stamp(True)
        a(*setup[q2:])
        if o.yprio:
            a(*self.prio(1))
        if o.vpos == 1:
            a(*va)
        if o.kownpos == 1:
            a(*kown)
        self.stamp(True)
        a(f"s_waitcnt vmcnt({6 if o.kownpos == 1 else 4 if o.vpos == 1 else 2})")
        self.stamp()
        self.normalize(VS, VS + 16, VS + 24, write=wfrag(V_FW, VS, 0))
        self.stamp(True)
        if o.vpos == 2:
            a(*va)
        if o.kownpos == 2:
            a(*kown)
        a("s_waitcnt lgkmcnt(0)",
          f"s_bitcmp1_b32 s{S_HEAD}, 0", f"s_cselect_b32 s{T+3}, 16, 0", f"s_lshr_b32 s{S_TB}, s{S_TB}, s{T+3}",
          f"s_and_b32 s{T+3}, s{S_TB}, 0x7fff", f"s_lshl_b32 s{S_TB}, s{S_TB}, 16",
          f"v_mov_b32 v{V_T}, {hex(LOG2E)}", f"v_mul_f32 v{V_T}, s{S_TB}, v{V_T}",
          f"s_cmp_gt_u32 s{T+3}, {hex(T_LIMIT)}", f"v_readfirstlane_b32 s{S_SC}, v{V_T}",
          f"v_mul_f32 v{V_T2}, -0.5, abs(v{V_T})", f"v_cvt_pk_bf16_f32 v{VS+15}, v{V_T2}, 0",
          "s_cbranch_scc1 L_slow0")
        self.stamp(True)
        a("s_waitcnt vmcnt(4)")
        self.stamp(True)
        self.normalize(VS + 8, VS + 16, VS + 24, S_SC, write=wfrag(V_T3, VS + 8, 0))
        self.stamp(True)
        a("s_waitcnt vmcnt(2) lgkmcnt(0)", "s_barrier")
        self.stamp()
        rq = lambda j: [f"ds_read_b128 {Q(j,0)}, v{V_XW+j}", f"ds_read_b128 {Q(j,1)}, v{V_XW+j} offset:1024"]
        rv = [rdv(0, 0, 0), rdv(0, 0, 1), rdv(0, 1, 0), rdv(0, 1, 1)]
        pr = sum((self.prio(n, role) for role, p, n in o.p0 if p < 0), [])
        d = self.deferred_scalars()
        if o.fill:
            a(rdk(0, 0), rq(0)[0], rdk(0, 1), rq(0)[1], *rq(1), *pr, *d[0], *d[1], *d[2], *d[3],
              "s_waitcnt lgkmcnt(4)", qk(0, 0, 0, 0), *d[4], "s_waitcnt lgkmcnt(2)", qk(0, 1, 0, 0),
              *rq(2), *rq(3), *rv, *d[5], "s_waitcnt lgkmcnt(8)")
        else:
            a(rdk(0, 0), rdk(0, 1), *rq(0), *rq(1), *rq(2), *rq(3), *rv, *pr)
            a(*d[0], *d[1], "s_waitcnt lgkmcnt(10)", qk(0, 0, 0, 0), qk(0, 1, 0, 0), *d[2], *d[3], *d[4], *d[5],
              "s_waitcnt lgkmcnt(4)", "s_nop 1")

    def epilogue(self):
        a = self.a
        U = self.last_unit
        a(pv(15, 0, U, 3), f"v_readfirstlane_b32 s{S_T}, v{V_T2}", pv(15, 1, U, 3),
          f"s_cmp_lg_u32 s{S_T}, 0", "s_cbranch_scc1 L_slow")
        a(*[f"v_pk_add_f32 {vr(VO+2*i,2)}, {vr(VO+2*i,2)}, {vr(VO+16+2*i,2)}" for i in range(8)])
        if self.o.ldsout:
            a(f"v_mov_b32 v{V_VA}, v{V_XW+3}", f"v_sub_u32 v{V_KA}, v{V_XW+3}, v{V_L16}", f"v_add_u32 v{V_KA}, v{V_KA}, v{V_OUT}")
        a("s_waitcnt lgkmcnt(0)")
        a(*[f"v_pk_add_f32 {vr(VO+2*i,2)}, {vr(VO+2*i,2)}, {vr(VO+32+2*i,2)}" for i in range(8)])
        self.finalize(VO + 48, VO)

    def slow(self):
        a = self.a
        KR, TT, M, MN, AL = VS + 16, VS + 40, VS + 48, VS + 49, VS + 50
        a("L_slow0:", *self.deferred_scalars()[3])
        a("L_slow:", "s_setprio 0", "s_waitcnt vmcnt(0) lgkmcnt(0)", "s_barrier")
        a(ld4(KR, S_Q, S_QOFF), ld3(KR, S_Q, S_QOFF))
        a(f"s_lshl_b32 s{S_L0}, s{S_WV}, 12", f"v_add_u32 v{V_XW}, s{S_L0}, v{V_L16}",
          f"v_mov_b32 v{VK}, 0x3f80", f"v_mov_b32 v{VK+1}, 0", f"v_mov_b32 v{VK+2}, 0x3f80", f"v_mov_b32 v{VK+3}, 0",
          "s_mov_b64 exec, 0xffff", f"ds_write_b128 v{V_XW}, {vr(VK,4)} offset:3840", "s_mov_b64 exec, -1",
          f"v_mov_b32 v{KR+7}, 0", f"v_mov_b32 v{M}, 0xff800000", "s_nop 7")
        a(*[f"v_mov_b32 v{VO+r}, 0" for r in range(16)])
        a("s_waitcnt vmcnt(0)")
        self.normalize(KR, TT, VS + 52, S_SC)
        a(*wfrag(V_FW1, KR, 0), f"ds_read_b128 {Q(0,0)}, v{V_XW}", f"ds_read_b128 {Q(0,1)}, v{V_XW} offset:1024",
          "s_waitcnt lgkmcnt(0)")
        a(f"s_mov_b32 s{S_GV}, s{S_WVV}", f"s_mov_b32 s{S_CNT}, 16", "L_slow_group:")
        a(ld4(KR, S_K, S_GV), ld3(KR, S_K, S_GV), f"s_add_u32 m0, s{S_L0}, 2048", "s_nop 0", *dv(S_GV, 0), *dv(S_GV, 1),
          "s_waitcnt vmcnt(0)")
        self.normalize(KR, TT, VS + 52)
        a(*wfrag(V_FW1, KR, 0),
          f"v_mov_b32 v{V_KA}, v{V_L16}", f"v_mov_b32 v{V_VA}, v{V_KB+1}", f"v_mov_b32 v{V_VA+1}, v{V_KB+2}",
          f"s_mov_b32 s{S_G}, 8", "s_waitcnt lgkmcnt(0)", "s_barrier", "L_slow_tile:")
        a(rdk(0, 0), rdk(0, 1), rdv(0, 0, 0), rdv(0, 0, 1), rdv(0, 1, 0), rdv(0, 1, 1))
        a("s_waitcnt lgkmcnt(0)", qk(0, 0, 0, 0), qk(0, 1, 0, 0), "s_nop 15")
        a(f"v_max3_f32 v{MN}, v{VS}, v{VS+1}, v{M}")
        for r in range(2, 16, 2):
            a(f"v_max3_f32 v{MN}, v{VS+r}, v{VS+r+1}, v{MN}")
        a(f"v_mov_b32 v{AL}, v{MN}", "s_nop 1", f"v_permlane32_swap_b32 v{MN}, v{AL}", "s_nop 1",
          f"v_max_f32 v{MN}, v{MN}, v{AL}", f"v_sub_f32 v{AL}, v{M}, v{MN}", f"v_exp_f32 v{AL}, v{AL}", f"v_mov_b32 v{M}, v{MN}")
        for r in range(16):
            a(f"v_sub_f32 v{VS+r}, v{VS+r}, v{MN}", f"v_mul_f32 v{VO+r}, v{AL}, v{VO+r}")
        a(*[ex(0, r) for r in range(16)])
        a("s_nop 1", pv(0, 0, 0, 0), pv(0, 1, 0, 0),
          f"v_add_u32 v{V_KA}, 4096, v{V_KA}", f"v_add_u32 v{V_VA}, 4096, v{V_VA}", f"v_add_u32 v{V_VA+1}, 4096, v{V_VA+1}",
          "s_nop 15", f"s_sub_u32 s{S_G}, s{S_G}, 1", f"s_cmp_lg_u32 s{S_G}, 0", "s_cbranch_scc1 L_slow_tile")
        a("s_barrier", f"s_add_u32 s{S_GV}, s{S_GV}, 14336", f"s_sub_u32 s{S_CNT}, s{S_CNT}, 1", f"s_cmp_lg_u32 s{S_CNT}, 0",
          "s_cbranch_scc1 L_slow_group")
        if self.o.ldsout:
            a(f"v_mov_b32 v{V_VA}, v{V_XW}", f"v_add_u32 v{V_KA}, s{S_L0}, v{V_OUT}")
        self.finalize(VO)
        a("s_endpgm")

    def build(self):
        a, o = self.a, self.o
        n = "standalone__qk_norm__prompt_kernel"
        a('.amdgcn_target "amdgcn-amd-amdhsa--gfx950"', ".text", f".globl {n}", ".p2align 8", f".type {n},@function", f"{n}:")
        self.prologue()
        self.stage("first", 0)
        self.stamp()
        a(f".p2align {o.align}", "L_loop:")
        self.stage("mid", 1, poll=True)
        self.stage("mid", 0, close=True)
        a("s_cbranch_scc1 L_loop")
        self.stamp()
        self.stage("last", 1)
        self.stamp()
        self.epilogue()
        self.stamp(True)
        if o.stamps:
            a("s_waitcnt vmcnt(0)")
        self.stamp()
        self.stamp_flush()
        a("L_end:", "s_endpgm")
        self.slow()
        kd = f""".section .rodata,"a"
.p2align 6
.amdhsa_kernel {n}
  .amdhsa_next_free_vgpr {NV}
  .amdhsa_next_free_sgpr {102 if o.stamps else 72}
  .amdhsa_accum_offset {(NV + 3) // 4 * 4}
  .amdhsa_group_segment_fixed_size 0
  .amdhsa_kernarg_size 56
  .amdhsa_user_sgpr_count 2
  .amdhsa_user_sgpr_kernarg_segment_ptr 1
  .amdhsa_system_sgpr_workgroup_id_x 1
.end_amdhsa_kernel
"""
        return HEADER + a.text() + kd


def parser():
    tup = lambda s: tuple(map(int, s.split(","))) if s != "none" else None
    ap = argparse.ArgumentParser()
    ap.add_argument("out")
    ap.add_argument("--stamps", action="store_true")
    ap.add_argument("--fine", type=int, default=0)
    ap.add_argument("--poll_p", type=int, default=4)
    ap.add_argument("--vm_pos", type=tup, default=(31, 41, 51))
    sched = lambda x: [(e.split(":")[0], int(e.split(":")[1]), int(e.split(":")[2])) for e in x.split(",") if e]
    ap.add_argument("--kbin", type=int, default=1)
    ap.add_argument("--pubbar", type=int, default=1)
    ap.add_argument("--directst", type=int, default=1)
    ap.add_argument("--st_s", type=int, default=2)
    ap.add_argument("--align", type=int, default=6)
    ap.add_argument("--stfl", type=lambda x: x.replace("_", " "), default="sc1")
    ap.add_argument("--b_p", type=int, default=2)
    ap.add_argument("--kb_pos", type=tup, default=(0, 1))
    ap.add_argument("--vpos", type=int, default=1)
    ap.add_argument("--yprio", type=int, default=1)
    ap.add_argument("--qgap", type=int, default=26)
    ap.add_argument("--ks", type=int, default=3)
    ap.add_argument("--vs", type=tup, default=(2, 3))
    ap.add_argument("--ds", type=tup, default=(1, 2))
    ap.add_argument("--bs", type=int, default=2)
    ap.add_argument("--fill", type=int, default=0)
    ap.add_argument("--mu", type=int, default=0)
    ap.add_argument("--earlyw", type=int, default=1)
    ap.add_argument("--pollat", type=int, default=0)
    ap.add_argument("--skipflag", type=int, default=1)
    ap.add_argument("--touch", type=int, default=0)
    ap.add_argument("--touch2", type=int, default=0)
    ap.add_argument("--latev", type=int, default=0)
    ap.add_argument("--p1", type=sched, default=[])
    ap.add_argument("--ackdiag", action="store_true")
    ap.add_argument("--polldiag", action="store_true")
    ap.add_argument("--probe", type=tup, default=None)
    ap.add_argument("--forceabort", action="store_true")
    ap.add_argument("--ks0", type=int, default=2)
    ap.add_argument("--kownpos", type=int, default=2)
    ap.add_argument("--p0", type=sched, default=sched("b:-1:1,o:2:0,y:4:0,y:6:1,y:7:0,y:8:1,y:11:0,y:13:1"))
    ap.add_argument("--pm", type=sched, default=sched("y:10:0,y:13:1"))
    ap.add_argument("--p7", type=sched, default=sched("y:11:0"))
    ap.add_argument("--own_p", type=int, default=0)
    ap.add_argument("--c_p", type=int, default=8)
    ap.add_argument("--pub_p", type=int, default=8)
    ap.add_argument("--xbar", type=tup, default=(14, 2))
    ap.add_argument("--outfl", default="sc1")
    ap.add_argument("--tail", type=int, default=2)
    ap.add_argument("--ldsout", type=int, default=1)
    ap.add_argument("--split", type=int, default=0)
    ap.add_argument("--s0", type=lambda x: (x.split(":")[0], tup(x.split(":")[1])), default=None)
    return ap


def generate(argv):
    o = parser().parse_args(argv)
    g = Gen(o)
    open(o.out, "w").write(g.build())
    return g.nst


if __name__ == "__main__":
    import sys
    print("stamps:", generate(sys.argv[1:]))
```

```python
import argparse

HEADER = """; Kernarg layout for this problem (56 bytes, ptrs only, base s[0:1]):
;   offset   0: d_in[0] q  shape=(1, 16, 4096, 28) dtype=bfloat16 strides=(3670016, 229376, 56, 2) contiguous=True
;   offset   8: d_in[1] k  shape=(1, 16, 4096, 28) dtype=bfloat16 strides=(3670016, 229376, 56, 2) contiguous=True
;   offset  16: d_in[2] v  shape=(1, 16, 4096, 28) dtype=bfloat16 strides=(3670016, 229376, 56, 2) contiguous=True
;   offset  24: d_in[3] t  shape=(16,) dtype=bfloat16 strides=(2,) contiguous=True
; @launch grid=(256,1,1) block=(512,1,1) lds=163840
;
; Fast path: subtracts the Cauchy-Schwarz bound |t|*log2(e) of the row maximum, taken only when |t| <= 20.75.
"""

HEAD_BYTES = 4096 * 56
WSK_HEAD = 128 * 2048
LOG2E = 0x3FB8AA3B
EPS = 0x358637BD
T_LIMIT = 0x41A6
BUF0, QAREA = 0x10000, 0x20000
ABORT_WORD, COUNT_WORD = 3852, 3860
SPIN_LIMIT = 1 << 16

V_LANE, V_T, V_ROW, V_L16, V_KA, V_OUT, V_T2, V_IDX = 0, 1, 2, 3, 4, 5, 6, 7
V_VA = 8
V_XW = 10
V_T3, V_T4 = 14, 15
VQ, VO, VS, VK, VV = 16, 48, 112, 176, 192
VR, VRT = 208, 232
V_FW = 240
V_FW1 = 241
V_KB = 242
V_NT = 246
V_ID = 248
V_KA1 = 250
V_DUM = 253
NV = 254

S_Q, S_K, S_V, S_O, S_W, S_D = 20, 24, 28, 32, 36, 40
S_HEAD, S_C, S_WV, S_KS, S_QG = 44, 45, 46, 47, 48
S_G, S_GK, S_GV, S_L0, S_N0, S_CNT, S_WK, S_WVV = 49, 50, 51, 52, 53, 54, 55, 56
S_TB, S_SC, S_ABORT, S_QOFF, S_N1 = 57, 58, 59, 60, 61
S_CM, S_CH = 18, 19
S_M48 = 62
S_T = 64
S_ST = 72


class Asm:
    def __init__(self):
        self.lines = []
        self.n = 0

    def __call__(self, *ls):
        for l in ls:
            self.lines.append(l if l.endswith(":") or l.startswith(".") else "    " + l)

    def label(self, base):
        self.n += 1
        return f"{base}_{self.n}"

    def text(self):
        return "\n".join(self.lines) + "\n"


def vr(b, n): return f"v[{b}:{b+n-1}]"
def sr(b): return f"s[{b}:{b+3}]"
def S(t, o=0, n=16): return vr(VS + 16 * (t % 4) + o, n)
def K(u, f): return vr(VK + 8 * (u % 2) + 4 * f, 4)
def V(u, f): return vr(VV + 8 * (u % 2) + 4 * f, 4)
def Vh(u, f, h): return vr(VV + 8 * (u % 2) + 4 * f + 2 * h, 2)
def Q(b, f): return vr(VQ + 8 * b + 4 * f, 4)
def O(b): return vr(VO + 16 * b, 16)
def qk(t, f, u, b): return f"v_mfma_f32_32x32x16_bf16 {S(t)}, {K(u,f)}, {Q(b,f)}, {S(t) if f else 0}"
def pv(t, f, u, b): return f"v_smfmac_f32_32x32x32_bf16 {O(b)}, {V(u,f)}, {S(t,8*f,8)}, v{V_IDX}"
def rdk(u, f, b=0): return f"ds_read_b128 {K(u,f)}, v{V_KA1 if b else V_KA} offset:{(u%4)*16384+1024*f}"
def rdv(u, f, h, b=0): return f"ds_read_b64_tr_b16 {Vh(u,f,h)}, v{(V_KA1+1 if b else V_VA)+f} offset:{(u%4)*16384+224*h}"
def rdk_abs(u, f, n): return f"ds_read_b128 {K(u,f)}, v{V_KB} offset:{n*4096+1024*f}"
def rdv_abs(u, f, h, n): return f"ds_read_b64_tr_b16 {Vh(u,f,h)}, v{V_KB+1+f} offset:{n*4096+224*h}"


def resolve(stream, pending):
    out, q = [], list(pending)
    for x in stream:
        if isinstance(x, tuple) and x[0] == "need":
            idx = [i for i, t in enumerate(q) if t in x[1]]
            if idx:
                q = q[max(idx) + 1:]
                assert len(q) <= 15
                out.append(f"s_waitcnt lgkmcnt({len(q)})")
            continue
        text, tag = (x[1], x[2]) if isinstance(x, tuple) else (x, None)
        if text.startswith("ds_"):
            q.append(tag)
        elif "lgkmcnt(" in text:
            n = int(text.split("lgkmcnt(")[1].split(")")[0])
            q = q[len(q) - n:] if n and len(q) > n else ([] if n == 0 else q)
        out.append(text)
    return out, q
def ex(t, r): return f"v_exp_f32 v{VS+16*(t%4)+r}, v{VS+16*(t%4)+r}"
def ld4(R, srd, so): return f"buffer_load_dwordx4 {vr(R,4)}, v{V_ROW}, {sr(srd)}, s{so} offen"
def ld3(R, srd, so): return f"buffer_load_dwordx3 {vr(R+4,3)}, v{V_ROW}, {sr(srd)}, s{so} offen offset:16"
def dk(so, j): return [f"buffer_load_dwordx4 v{V_L16}, {sr(S_W)}, s{so} offen offset:{1024*j} sc1 lds"]
VFL = [""]
def dv(so, j):
    ins = f"buffer_load_dwordx4 v{V_L16}, {sr(S_V)}, s{so} offen offset:{1024*j} {VFL[0]}lds"
    return [f"s_mov_b64 exec, s[{S_M48}:{S_M48+1}]", ins, "s_mov_b64 exec, -1"] if j else [ins]
def wfrag(addr, R, off): return [f"ds_write_b128 v{addr}, {vr(R,4)} offset:{off}", f"ds_write_b128 v{addr}, {vr(R+4,4)} offset:{off+1024}"]
FLAGLOAD = f"buffer_load_dwordx4 {vr(V_XW,4)}, off, {sr(S_D)}, 0 sc1"


def norm_chunks(R, U, T, s_scale=None):
    un = lambda g, i: f"v_mfma_f32_4x4x4_16b_bf16 {vr(U+4*g,4)}, {vr(V_ID,2)}, {vr(R+i,2)}, 0"
    dot = lambda i: f"v_dot2_f32_bf16 v{T+i%2}, v{R+i}, v{R+i}, {f'v{T+i%2}' if i > 1 else 0}"
    mul = lambda p: f"v_pk_mul_f32 {vr(U+p,2)}, {vr(U+p,2)}, {vr(T,2)} op_sel_hi:[1,0]"
    cvt = lambda i, p: f"v_cvt_pk_bf16_f32 v{R+i}, v{U+p}, v{U+p+1}"
    grp = lambda g, i: [mul(4 * g), mul(4 * g + 2), cvt(i, 4 * g), cvt(i + 1, 4 * g + 2)]
    scale = [f"v_mul_f32 v{T}, s{s_scale}, v{T}"] if s_scale is not None else []
    return [(0, [un(0, 0), dot(0), dot(1), un(1, 2)] + [dot(i) for i in range(2, 7)]),
            (3, [f"v_add_f32 v{T}, v{T}, v{T+1}"]),
            (2, [f"v_add_f32_dpp v{T}, v{T}, v{T} quad_perm:[1,0,3,2] row_mask:0xf bank_mask:0xf", f"v_sqrt_f32 v{T}, v{T}"]),
            (1, [f"v_add_f32 v{T}, {hex(EPS)}, v{T}", f"v_rcp_f32 v{T}, v{T}"]),
            (1, scale + grp(0, 0) + [un(0, 4)] + grp(1, 2) + [un(1, 6)]),
            (0, grp(0, 4) + ["s_nop 0", mul(4), cvt(6, 4)])]


def norm_chunks_valu(R, U, T, s_scale=None):
    un = lambda i: [f"v_lshlrev_b32 v{U+2*(i%3)}, 16, v{R+i}", f"v_and_b32 v{U+2*(i%3)+1}, 0xffff0000, v{R+i}"]
    dot = lambda i: f"v_dot2_f32_bf16 v{T+i%2}, v{R+i}, v{R+i}, {f'v{T+i%2}' if i > 1 else 0}"
    one = lambda i: (un(i + 2) if i + 2 < 7 else []) + [
        f"v_pk_mul_f32 {vr(U+2*(i%3),2)}, {vr(U+2*(i%3),2)}, {vr(T,2)} op_sel_hi:[1,0]",
        f"v_cvt_pk_bf16_f32 v{R+i}, v{U+2*(i%3)}, v{U+2*(i%3)+1}"]
    scale = [f"v_mul_f32 v{T}, s{s_scale}, v{T}"] if s_scale is not None else []
    return [(0, [dot(i) for i in range(7)]),
            (3, [f"v_add_f32 v{T}, v{T}, v{T+1}"] + un(0)
             + [f"v_add_f32_dpp v{T}, v{T}, v{T} quad_perm:[1,0,3,2] row_mask:0xf bank_mask:0xf",
                f"v_sqrt_f32 v{T}, v{T}", un(1)[0], f"v_add_f32 v{T}, {hex(EPS)}, v{T}", f"v_rcp_f32 v{T}, v{T}", un(1)[1]]),
            (0, []), (0, scale + one(0) + one(1)), (0, one(2) + one(3)), (0, one(4) + one(5) + one(6))]


class Gen:
    def __init__(self, o):
        self.o = o
        self.a = Asm()
        self.nst = 0

    def stamp(self, fine=False):
        if self.o.stamps and self.o.fine == 2 and self.nst < 9:
            self.a(f"s_memtime s[{S_ST+2*self.nst}:{S_ST+2*self.nst+1}]")
            self.nst += 1
        elif self.o.stamps and (self.o.fine or not fine):
            j = self.nst
            self.a("s_memtime s[100:101]", "s_memrealtime s[98:99]", "s_waitcnt lgkmcnt(0)",
                   f"s_mov_b32 s{S_ST+2*j}, s100", f"s_mov_b32 s{S_ST+2*j+1}, s98")
            self.nst += 1

    def stamp_list(self):
        j = self.nst
        self.nst += 1
        return ["s_memtime s[100:101]", "s_memrealtime s[98:99]", "s_waitcnt lgkmcnt(0)",
                f"s_mov_b32 s{S_ST+2*j}, s100", f"s_mov_b32 s{S_ST+2*j+1}, s98"]

    def stamp_flush(self):
        if not self.o.stamps:
            return
        a, n = self.a, self.nst
        if self.o.cprobe:
            i, j, off = self.o.cprobe
            a(f"s_sub_u32 s4, s{S_ST+2*j}, s{S_ST+2*i}", f"s_max_u32 s4, s4, {off}", f"s_sub_u32 s4, s4, {off}",
              "s_min_u32 s4, s4, 20000",
              "L_probe:", "s_memrealtime s[6:7]", "s_waitcnt lgkmcnt(0)", f"s_sub_u32 s6, s6, s{S_ST+1+2*(n-1)}",
              "s_cmp_lt_u32 s6, s4", "s_cbranch_scc1 L_probe")
            return
        if self.o.probe:
            i, j, k, allwg = self.o.probe
            if not allwg:
                a("s_cmp_lg_u32 s2, 0", "s_cbranch_scc1 L_end")
            a(f"s_cmp_lg_u32 s{S_WV}, 0", "s_cbranch_scc1 L_end",
              f"s_sub_u32 s4, s{S_ST+1+2*j}, s{S_ST+1+2*i}", f"s_mul_i32 s4, s4, {k}", "s_min_u32 s4, s4, 20000",
              "L_probe:", "s_memrealtime s[6:7]", "s_waitcnt lgkmcnt(0)", f"s_sub_u32 s6, s6, s{S_ST+1+2*(n-1)}",
              "s_cmp_lt_u32 s6, s4", "s_cbranch_scc1 L_probe")
            return
        a("s_add_u32 s4, s16, 0x4000000", "s_addc_u32 s5, s17, 0", "s_mov_b32 s6, 0x100000", "s_mov_b32 s7, 0x00020000",
          "s_lshl_b32 s8, s2, 3", f"s_add_u32 s8, s8, s{S_WV}", f"s_mul_i32 s8, s8, {8*n}", "v_mov_b32 v1, 0", "s_mov_b64 exec, 1")
        for j in range(n):
            a(f"v_mov_b32 v14, s{S_ST+2*j}", f"v_mov_b32 v15, s{S_ST+2*j+1}",
              f"buffer_store_dwordx2 v[14:15], v1, s[4:7], s8 offen offset:{8*j}", "s_nop 1")

    def srd(self, d, base, s_off, nbytes):
        self.a(f"s_add_u32 s{d}, s{base}, s{s_off}", f"s_addc_u32 s{d+1}, s{base+1}, 0",
               f"s_mov_b32 s{d+2}, {nbytes}", f"s_mov_b32 s{d+3}, 0x00020000")

    def normalize(self, *job, write=None):
        chunks = (norm_chunks if self.o.mu & 1 else norm_chunks_valu)(*job)
        early = write and self.o.earlyw
        for k, (gap, c) in enumerate(chunks):
            if early and k == len(chunks) - 1:
                self.a(write[0])
            self.a(*([f"s_nop {gap - 1}"] if gap else []), *c)
        if write:
            self.a(*write[1 if early else 0:])

    def tr_addresses(self, dst):
        a, t, u = self.a, V_T, V_T2
        a(f"v_lshrrev_b32 v{t}, 5, v0", f"v_mul_u32_u24 v{dst}, 448, v{t}",
          f"v_bfe_u32 v{t}, v0, 2, 2", f"v_mad_u32_u24 v{dst}, v{t}, 56, v{dst}",
          f"v_and_b32 v{t}, 1, v0", f"v_lshl_add_u32 v{dst}, v{t}, 5, v{dst}",
          f"v_bfe_u32 v{t}, v0, 4, 1", f"v_lshl_add_u32 v{dst}, v{t}, 4, v{dst}",
          f"v_bfe_u32 v{t}, v0, 1, 1", f"v_lshl_add_u32 v{dst}, v{t}, 3, v{dst}",
          f"v_and_b32 v{t}, 19, v0", f"v_cmp_eq_u32 vcc, 19, v{t}",
          f"v_add_u32 v{dst+1}, {2048+896}, v{dst}", f"v_add_u32 v{dst}, 2048, v{dst}", f"v_mov_b32 v{u}, 3840",
          f"v_cndmask_b32 v{dst}, v{dst}, v{u}, vcc", f"v_cndmask_b32 v{dst+1}, v{dst+1}, v{u}, vcc")

    def finalize(self, R, X=None):
        a, fl = self.a, self.o.outfl
        add = lambda i: [f"v_pk_add_f32 {vr(R+2*i,2)}, {vr(R+2*i,2)}, {vr(X+2*i,2)}"] if X is not None else ["s_nop 0"]
        a(*add(6), f"v_mov_b32 v{V_T3}, v{R+12}", f"v_mov_b32 v{V_T4}, v{R+12}", *add(0), *add(1),
          f"v_permlane32_swap_b32 v{V_T3}, v{V_T4}", *add(2), f"v_rcp_f32 v{V_T4}, v{V_T4}", *add(3))
        for i in range(8):
            if X is not None and i in (4, 5, 7):
                a(*add(i))
            a(f"v_pk_mul_f32 {vr(R+2*i,2)}, {vr(R+2*i,2)}, {vr(V_T3,2)} op_sel:[0,1] op_sel_hi:[1,1]",
              f"v_cvt_pk_bf16_f32 v{R+i}, v{R+2*i}, v{R+2*i+1}")
            if self.o.ldsout:
                if i in (1, 3, 5):
                    a(f"ds_write_b64 v{V_KA}, {vr(R+i-1,2)} offset:{4*(i-1)}")
                continue
            if i == 3:
                a(f"buffer_store_dwordx4 {vr(R,4)}, v{V_OUT}, {sr(S_O)}, s{S_QOFF} offen {fl}")
            if i == 5:
                a(f"buffer_store_dwordx2 {vr(R+4,2)}, v{V_OUT}, {sr(S_O)}, s{S_QOFF} offen offset:16 {fl}")
        if self.o.ldsout:
            a("s_mov_b32 exec_hi, 0", f"ds_write_b64 v{V_KA}, {vr(R+6,2)} offset:24", "s_mov_b32 exec_hi, -1",
              f"ds_read_b128 {vr(R+8,4)}, v{V_VA}", f"ds_read_b128 {vr(R+12,4)}, v{V_VA} offset:1024", "s_waitcnt lgkmcnt(1)",
              f"buffer_store_dwordx4 {vr(R+8,4)}, v{V_L16}, {sr(S_O)}, s{S_QOFF} offen {fl}",
              f"s_mov_b64 exec, s[{S_M48}:{S_M48+1}]", "s_waitcnt lgkmcnt(0)",
              f"buffer_store_dwordx4 {vr(R+12,4)}, v{V_L16}, {sr(S_O)}, s{S_QOFF} offen offset:1024 {fl}",
              "s_mov_b64 exec, -1")
            return
        a("s_mov_b32 exec_hi, 0",
          f"buffer_store_dwordx2 {vr(R+6,2)}, v{V_OUT}, {sr(S_O)}, s{S_QOFF} offen offset:24 {fl}",
          "s_mov_b32 exec_hi, -1")

    def prio(self, n, role="y"):
        if role == "b":
            return [f"s_setprio {n}"]
        l = self.a.label("L_prio")
        return [f"s_cbranch_{'vccnz' if role == 'y' else 'vccz'} {l}", f"s_setprio {n}", f"{l}:"]

    def poll_block(self):
        return [f"s_cmp_lg_u32 s{S_CNT}, 3", "s_cbranch_scc1 L_polled", f"s_mov_b32 s{S_T}, 0",
                "L_poll:", "s_waitcnt vmcnt(0)",
                f"v_and_b32 v{V_XW}, v{V_XW}, v{V_XW+1}", f"v_and_b32 v{V_XW+2}, v{V_XW+2}, v{V_XW+3}",
                f"v_and_b32 v{V_XW}, v{V_XW}, v{V_XW+2}", f"s_add_u32 s{S_T}, s{S_T}, 1",
                f"v_readfirstlane_b32 s{S_T+1}, v{V_XW}",
                *([f"s_cmp_eq_u32 s{S_WV}, 5", f"s_cselect_b32 s{S_T+1}, 0, s{S_T+1}"] if self.o.forceabort else []),
                f"s_cmp_eq_u32 s{S_T+1}, 0xdddddddd", "s_cbranch_scc1 L_ready",
                FLAGLOAD, f"s_cmp_lt_u32 s{S_T}, {64 if self.o.forceabort else SPIN_LIMIT}", "s_cbranch_scc1 L_poll",
                "s_waitcnt vmcnt(0)", f"s_mov_b32 s{S_ABORT}, 1", "L_ready:",
                *(["s_barrier"] if self.o.latev else []), "L_polled:"]

    def stage(self, kind, par, poll=False, close=False):
        a, o = self.a, self.o
        sh = {(p, s): [] for p in range(16) for s in range(4)}
        post = {(p, s): [] for p in range(16) for s in range(4)}
        last, first, mid = kind == "last", kind == "first", kind == "mid"
        t0 = 16 - 4 * o.tail if last else 99
        unit = lambda t: (t // 4, t % 4) if t < t0 else (t0 // 4 + t - t0, 3)
        mf = {}
        for p in range(16):
            for f in range(2):
                mf[(p, f)] = qk(p + 1, f, *unit(p + 1))
                mf[(p, 2 + f)] = pv(p - 1, f, *unit(p - 1))
        if first:
            mf[(0, 2)] = mf[(0, 3)] = None
        if last:
            mf[(15, 0)], mf[(15, 1)], mf[(15, 2)], mf[(15, 3)] = mf[(15, 2)], mf[(15, 3)], None, None
        nvm = 0

        if not last:
            sh[(12, o.bs)] += ["s_waitcnt vmcnt(0) lgkmcnt(0)", "s_barrier"]
        if mid and close and o.touch2:
            sh[(1, 1)] += [f"buffer_load_dword v{V_DUM}, off, {sr(S_O)}, s{S_QOFF}"]
        if mid:
            if close:
                sh[(15, 3)] += [f"s_sub_u32 s{S_CNT}, s{S_CNT}, 1", f"s_cmp_lg_u32 s{S_CNT}, 0"]
            if poll:
                l = a.label("L_fl")
                sh[(o.poll_p - 2, 2)] += [f"s_cmp_lg_u32 s{S_CNT}, 3", f"s_cbranch_scc1 {l}", FLAGLOAD, f"{l}:"]
                sh[(o.poll_p, 0)] += self.poll_block()
            for g in range(4):
                half, part, p = g // 2, g % 2, o.poll_p + g
                sh[(p, 0)] += [f"s_add_u32 m0, s{S_L0}, {par*BUF0 + half*32768 + part*2048}"]
                if part == 0:
                    sh[(p - 2, 3)] += [f"s_cmp_ge_u32 s{S_G}, s{S_CM}", f"s_addc_u32 s{S_CH}, s{S_G}, 0"]
                    sh[(p - 1, 0)] += [f"s_add_u32 s{S_G}, s{S_G}, 1"]
                    sh[(p - 1, 3)] += [f"s_lshl_b32 s{S_GK}, s{S_CH}, 14", f"s_add_u32 s{S_GK}, s{S_GK}, s{S_WK}"]
                else:
                    sh[(p - 1, 3)] += [f"s_mul_i32 s{S_GV}, s{S_CH}, 14336", f"s_add_u32 s{S_GV}, s{S_GV}, s{S_WVV}"]
                for j in range(2):
                    sh[(p, o.ds[j])] += dv(S_GV, j) if part else dk(S_GK, j)
        for role, p, n in (o.p0 if first else o.p7 if last else o.pm + (o.p1 if poll else [])):
            if p >= 0:
                sh[(p, 1)] += self.prio(n, role)

        for p in range(16):
            u, jj = p // 4 + 1, p % 4
            if jj == 1 and 4 * (u - 1) < t0:
                sh[(p, 1)].append(("need", [f"V{u-1}"]))
            late = first and o.kbin and u == 2
            if 4 * u >= t0 or (late and jj < 2):
                continue
            if jj == 2 and not late:
                sh[(p, o.vs[0])].append(("need", [f"K{u}"]))
            b = par ^ (u == 4)
            if jj < 2:
                sh[(p, (o.ks0 if first else o.ks) if p != 12 else 3)].append(("ds", rdk(u, jj, b), f"K{u}"))
            else:
                sh[(p, o.vs[0])].append(("ds", rdv(u, jj - 2, 0, b), f"V{u}"))
                sh[(p, o.vs[1])].append(("ds", rdv(u, jj - 2, 1, b), f"V{u}"))
        if first:
            ev = []
            def spread(R, p0, addr, off, tag):
                c = (norm_chunks if o.mu & 2 else norm_chunks_valu)(R, VRT, V_NT)
                slots = [(p0 + k // 4, k % 4) for k in range(8)]
                pos = [slots[k] for k in (0, 1, 2, 3, 4, 6)]
                post[pos[0]].append(("wait", tag))
                for k in range(6):
                    post[pos[k]] += [x for x in c[k][1] if not x.startswith("s_nop")]
                sh[slots[7]] += wfrag(addr, R, off)
                return slots[7]
            w = None if o.ownfill else spread(VR, o.own_p, V_FW1, 32768, "Kown")
            if o.ownfill:
                pass
            elif o.directst:
                va, st0, st1 = V_T4, (w[0], 1), (w[0], 3)
            else:
                sh[w] += [("ds", f"ds_read_b128 {vr(VR,4)}, v{V_T} offset:32768", "rb"), ("ds", f"ds_read_b128 {vr(VR+4,4)}, v{V_T} offset:33792", "rb")]
                va, st0, st1 = V_L16, (w[0] + 1, o.st_s), (w[0] + 1, o.st_s + 1)
                sh[st0].append(("need", ["rb"]))
            if not o.ownfill:
                ev.append((st0, [f"buffer_store_dwordx4 {vr(VR,4)}, v{va}, {sr(S_W)}, s{S_GK} offen {o.stfl}"], "st0"))
                ev.append((st1, [f"buffer_store_dwordx4 {vr(VR+4,4)}, v{va}, {sr(S_W)}, s{S_GK} offen offset:1024 {o.stfl}"], "st"))
            if not o.kbfill:
                spread(VR + 8, o.b_p, V_FW, 32768, "Kb")
            spread(VR + 16, o.c_p, V_FW1, 0, "Kc")
            assert o.kbin and o.directst
            p = o.kb_pos
            if not (o.kbearly or o.kbfill):
                ev += [((p[0], 1), [ld4(VR + 8, S_K, S_N0)], "x"), ((p[0], 2), [ld3(VR + 8, S_K, S_N0)], "Kb")]
            ev += [((p[1], 0), [f"s_add_u32 m0, s{S_L0}, {BUF0 + 32768 + 2048}", "s_nop 0"] + dv(S_N0, 0), "x"),
                   ((p[1], 2 if p[1] == o.own_p + 1 else 1), dv(S_N0, 1), "Vb")]
            p = o.vm_pos
            two = lambda x: ((x // 10, x % 10), (x // 10, x % 10 + 1))
            kc, vc, vo = two(p[0]), two(p[1]), two(p[2])
            ev += [(kc[0], [ld4(VR + 16, S_K, S_N1)], "x"), (kc[1], [ld3(VR + 16, S_K, S_N1)], "Kc"),
                   (vc[0], [f"s_add_u32 m0, s{S_L0}, 2048", "s_nop 0"] + dv(S_N1, 0), "x"), (vc[1], dv(S_N1, 1), "x"),
                   (vo[0], [f"s_add_u32 m0, s{S_L0}, {32768 + 2048}", "s_nop 0"] + dv(S_QOFF, 0), "x"), (vo[1], dv(S_QOFF, 1), "Vo")]
            if o.touch:
                ev.append(((o.touch // 10, o.touch % 10), [f"buffer_load_dword v{V_DUM}, off, {sr(S_O)}, s{S_QOFF}"], "x"))
            ev.sort(key=lambda e: e[0])
            assert len({e[0] for e in ev}) == len(ev)
            for pos, ins, tag in ev:
                sh[pos] += ins
                if o.ackdiag and tag == "st":
                    sh[pos] += self.stamp_list() + ["s_waitcnt vmcnt(0)"] + self.stamp_list()
            pre = ["x"] * (9 if o.kbfill else 7) + ["Kown"] + ((["x", "Kb"] if o.kbearly else []) + ["st0", "st"] if o.ownfill else [])
            order = pre + [e[2] for e in ev]
            def cnt(tag, pos, incl):
                n = len(pre) + sum(1 for e in ev if e[0] < pos or (incl and e[0] == pos))
                assert order.index(tag) < n
                return n - order.index(tag) - 1
            for pos in post:
                post[pos] = [f"s_waitcnt vmcnt({cnt(x[1], pos, True)})" if isinstance(x, tuple) and x[0] == "wait" else x for x in post[pos]]
            l = a.label("L_pub")
            flag = [f"s_cmp_lg_u32 s{S_WV}, 0", f"s_cbranch_scc1 {l}", "s_mov_b64 exec, 1",
                    f"buffer_store_byte v{V_IDX}, v0, {sr(S_D)}, s{S_C} offen sc1", "s_mov_b64 exec, -1", f"{l}:"]
            assert o.pubbar and not o.latev
            pub = (o.pub_p, 0)
            after = [e[0] for e in ev if e[0] > pub]
            assert o.pubzero or not after
            n2 = min(cnt(t, (6, 0), False) for t in (("Vb", "st") if o.pub_p == 6 else ("Vb",)))
            if o.pub_p == 6 and o.pubzero:
                n2 = 0
            sh[(6, 0)] = [f"s_waitcnt vmcnt({n2}) lgkmcnt(0)", "s_barrier",
                          ("ds", rdk(2, 0), "K2"), ("ds", rdk(2, 1), "K2")] + (flag if o.pub_p == 6 and not after else []) + sh[(6, 0)]
            sh[(6, 3)] = [("need", ["K2"])] + sh[(6, 3)]
            if o.pub_p != 6:
                sh[pub] = [f"s_waitcnt vmcnt({0 if o.pubzero else cnt('st', pub, False)})", "s_barrier"] + ([] if after else flag) + sh[pub]
            if after:
                assert after[-1] < (12, 0)
                sh[after[-1]] += flag
            if o.pubzero and not after:
                k = sh[(12, o.bs)].index("s_waitcnt vmcnt(0) lgkmcnt(0)")
                sh[(12, o.bs)][k] = "s_waitcnt lgkmcnt(0)"
            elif o.skipflag:
                k, lw = sh[(12, o.bs)].index("s_waitcnt vmcnt(0) lgkmcnt(0)"), a.label("L_w0")
                sh[(12, o.bs)][k:k + 1] = ["s_waitcnt vmcnt(1) lgkmcnt(0)", f"s_cmp_eq_u32 s{S_WV}, 0", f"s_cbranch_scc1 {lw}",
                                           "s_waitcnt vmcnt(0)", f"{lw}:"]
            if o.pollat:
                pb = [x.replace("L_poll", "L_dpoll").replace("L_ready", "L_dready") for x in self.poll_block()[2:]]
                sh[(o.pollat, 0)] += self.stamp_list() + [FLAGLOAD] + pb + self.stamp_list()
        if first and not o.pubbar:
            pub = (o.pub_p, 2)
            post[(o.pub_p, 1)] += [f"v_mov_b32 v{V_T}, {COUNT_WORD}", f"v_mov_b32 v{V_T2}, 1"]
            sh[pub] = [f"s_waitcnt vmcnt({cnt('st', pub, False)})", "s_mov_b64 exec, 1",
                       ("ds", f"ds_add_rtn_u32 v{V_T2}, v{V_T}, v{V_T2}", "cnt"), "s_mov_b64 exec, -1"] + sh[pub]
            post[(o.pub_p + 1, 0)] += [("need", ["cnt"]), f"v_readfirstlane_b32 s{S_T}, v{V_T2}"]
            sh[(o.pub_p + 1, 2)] = [f"s_cmp_lg_u32 s{S_T}, 7", f"s_cbranch_scc1 {l}", "s_mov_b64 exec, 1",
                                    f"buffer_store_byte v{V_IDX}, v0, {sr(S_D)}, s{S_C} offen sc1",
                                    "s_mov_b64 exec, -1", f"{l}:"] + sh[(o.pub_p + 1, 2)]
            assert all(e[0] < pub for e in ev) and o.pub_p > o.own_p + 2
            if o.pub_p >= 12:
                assert [e[2] for e in ev[-2:]] == ["st0", "st"] and sh[(12, 2)][0 if o.pub_p > 12 else 4].startswith("s_waitcnt vmcnt(0)")
                sh[(12, 2)][0 if o.pub_p > 12 else 4] = "s_waitcnt vmcnt(2) lgkmcnt(0)"
        if last:
            T = S_T
            sh[(0, 0)] += [f"s_lshl_b32 s{T+4}, s{S_QG}, 2"]
            for j in range(4):
                sh[(j, 1)] += [f"s_add_u32 s{T}, s{S_KS}, {1+j}"]
                sh[(j, 2)] += [f"s_and_b32 s{T}, s{T}, 3", f"s_add_u32 s{T}, s{T}, s{T+4}"]
                sh[(j, 3)] = [f"s_mul_i32 s{T}, s{T}, 12288", f"s_add_u32 s{T}, s{T}, {BUF0 + 4096 * (j % 3 if j < 3 else 0)}"] + sh[(j, 3)]
                post[(j, 3)] += [f"v_add_u32 v{V_XW+j}, s{T}, v{V_L16}"]
            for t in range(t0, 16):
                U, n = unit(t)[0], t
                for f in range(2):
                    sh[(t - 2, f)].append(("ds", rdk_abs(U, f, n), f"K{U}"))
                    vp = (t, f) if t > t0 else (t - 1, f)
                    sh[vp] += [("ds", rdv_abs(U, f, h, n), f"V{U}") for h in range(2)]
                sh[(t - 2, 3)].insert(0, ("need", [f"K{U}"]))
                if t < 14:
                    sh[(t + 1, 1)].insert(0, ("need", [f"V{U}"]))
            slots = [(p, s) for p in range(t0 - 2, 15) for s in (2, 3) if (t0 - 2, 2) <= (p, s) < o.xbar]
            items = [(j, g) for j in range(3) for g in range(4)]
            per = -(-len(items) // len(slots))
            k = 0
            for pos in slots:
                for _ in range(per):
                    if k < len(items) and pos >= (t0 - 2 + items[k][0], 2):
                        j, g = items[k]
                        sh[pos].append(f"ds_write_b128 v{V_XW+j}, {vr(VO+16*j+4*g,4)} offset:{1024*g}")
                        k += 1
            assert k == len(items)
            xr = lambda j: [("ds", f"ds_read_b128 {vr(VO+16*j+4*g,4)}, v{V_XW+3} offset:{4096*j+1024*g}", f"X{j}") for g in range(4)]
            post[(4, 3)] += [f"v_mov_b32 v{V_T}, {ABORT_WORD}"]
            sh[o.xbar] += [f"s_cmp_eq_u32 s{S_ABORT}, 0", "s_cbranch_scc1 L_noabort", f"ds_write_b32 v{V_T}, v{V_IDX}",
                           "L_noabort:", "s_waitcnt lgkmcnt(0)", "s_barrier",
                           ("ds", f"ds_read_b32 v{V_T2}, v{V_T}", "AB")] + xr(0) + xr(1)
            post[(14, 3)].append(("need", [f"V{unit(14)[0]}"]))
            post[(15, 1)] += [("need", ["X0"])] + xr(2)
            post[(15, 3)].append(("need", [f"V{unit(15)[0]}", "AB", "X1"]))

        stream = []
        for p in range(16):
            for s in range(4):
                if mf[(p, s)]:
                    stream.append(mf[(p, s)])
                stream += sh[(p, s)] + [ex(p, 4 * s + r) for r in range(4)] + post[(p, s)]
                if o.s0 and kind == o.s0[0] and s == 3 and p in o.s0[1]:
                    stream += self.stamp_list()
        if first and o.fill:
            stream.insert(stream.index(mf[(0, 1)]) + 1, ("need", ["Q"]))
        out, q = resolve(stream, (["Q"] * 4 if first and o.fill else []) + ["V0"] * 4 + ([None] * 2 if first and (o.ownfill or o.kbfill) else []))
        assert last or q == ["V4"] * len(q) and len(q) <= 4, q
        a(*out)
        self.last_unit = unit(15)[0]

    def deferred_scalars(self):
        T = S_T
        base = lambda d, b, off: [[f"s_add_u32 s{d}, s{b}, s{off}", f"s_addc_u32 s{d+1}, s{b+1}, 0"]]
        return (base(S_W, 16, T + 1) + [[f"s_lshl_b32 s{S_GK}, s{S_C}, 14", f"s_add_u32 s{S_GK}, s{S_GK}, s{S_WK}"]]
                + base(S_D, 14, T + 2) + base(S_O, 12, T)
                + [[f"s_max_u32 s{S_CM}, s{S_C}, 3", f"s_mov_b32 s{S_G}, 3"], [f"s_mov_b32 s{S_ABORT}, 0", f"s_mov_b32 s{S_CNT}, 3"]])

    def code_prefetch(self):
        a, o = self.a, self.o
        a("s_getpc_b64 s[70:71]", "L_pc:", f"v_lshlrev_b32 v{VQ}, {o.codepf}, v0", f"v_mov_b32 v{VQ+1}, s71",
          f"v_add_co_u32 v{VQ}, vcc, s70, v{VQ}", "s_nop 1", f"v_addc_co_u32 v{VQ+1}, vcc, 0, v{VQ+1}, vcc",
          f"v_cmp_ge_u32 vcc, (L_end - L_pc) >> {o.codepf}, v0", "s_and_saveexec_b64 s[70:71], vcc", "s_cbranch_execz L_nopf",
          f"global_load_dword v{V_DUM}, {vr(VQ,2)}, off", "L_nopf:", "s_mov_b64 exec, -1")

    def prologue(self):
        a, o = self.a, self.o
        T = S_T
        a("s_cmp_ge_u32 s2, 256", "s_cbranch_scc1 L_end")
        self.stamp()
        if o.codepf and o.pftop:
            self.code_prefetch()
        a("s_load_dwordx8 s[4:11], s[0:1], 0", "s_load_dwordx4 s[12:15], s[0:1], 32", "s_load_dwordx2 s[16:17], s[0:1], 48")
        if o.codepf and not o.pftop:
            self.code_prefetch()
        a(f"v_lshrrev_b32 v{V_T}, 6, v0", "v_and_b32 v0, 63, v0", f"v_readfirstlane_b32 s{S_WV}, v{V_T}",
          f"s_and_b32 s{S_HEAD}, s2, 7", f"s_lshl_b32 s{S_HEAD}, s{S_HEAD}, 1", f"s_lshr_b32 s{T}, s2, 7",
          f"s_add_u32 s{S_HEAD}, s{S_HEAD}, s{T}", f"s_bfe_u32 s{S_C}, s2, 0x40003",
          f"v_mul_u32_u24 v{V_ROW}, 28, v0", f"v_lshlrev_b32 v{V_L16}, 4, v0",
          f"s_mul_i32 s{T}, s{S_HEAD}, {HEAD_BYTES}", f"s_mul_i32 s{S_WVV}, s{S_WV}, 1792",
          f"s_mul_i32 s{S_QOFF}, s{S_C}, 14336", f"s_add_u32 s{S_QOFF}, s{S_QOFF}, s{S_WVV}",
          f"s_cmp_eq_u32 s{S_C}, 0", f"s_cselect_b32 s{S_GV}, 14336, 0", f"s_add_u32 s{S_GV}, s{S_GV}, s{S_WVV}",
          f"s_and_b32 s{T+3}, s{S_HEAD}, 14", f"s_lshl_b32 s{T+3}, s{T+3}, 1")
        for d in (S_K, S_Q, S_V):
            a(f"s_mov_b32 s{d+2}, {HEAD_BYTES}", f"s_mov_b32 s{d+3}, 0x00020000")
        a(f"s_lshl_b32 s{S_L0}, s{S_WV}, 12", f"s_lshl_b32 s{S_WK}, s{S_WV}, 11",
          f"s_and_b32 s{S_KS}, s{S_WV}, 3", f"s_lshr_b32 s{S_QG}, s{S_WV}, 2")
        zero = lambda b: f"v_mfma_f32_32x32x16_bf16 {O(b)}, {vr(VV,4)}, {vr(VV,4)}, 0"
        rec = Asm()
        self.a, keep = rec, self.a
        rec(*[f"v_mov_b32 v{VV+i}, 0" for i in range(4)])
        if o.mu:
          rec(f"v_and_b32 v{V_T}, 2, v0", f"v_cmp_eq_u32 vcc, 0, v{V_T}", f"v_and_b32 v{V_T}, 16, v{V_L16}",
            f"v_mov_b32 v{V_T2}, 0x3f80", f"v_lshlrev_b32 v{V_T}, v{V_T}, v{V_T2}",
            f"v_cndmask_b32 v{V_ID}, 0, v{V_T}, vcc", f"v_sub_u32 v{V_ID+1}, v{V_T}, v{V_ID}")
        rec(f"v_mov_b32 v{VK}, 0x3f80", f"v_mov_b32 v{VK+1}, 0", f"v_mov_b32 v{VK+2}, 0x3f80", f"v_mov_b32 v{VK+3}, 0",
            zero(0), f"s_add_u32 m0, s{S_L0}, {BUF0 + 2048}",
            f"v_lshlrev_b32 v{V_T}, 11, v0", f"v_and_b32 v{V_T}, 0x18000, v{V_T}",
            f"v_and_b32 v{V_T2}, 0xf0, v{V_L16}", f"v_add3_u32 v{V_T}, v{V_T}, v{V_T2}, s{S_L0}",
            f"ds_write_b128 v{V_T}, {vr(VK,4)} offset:3840",
            zero(1), f"s_add_u32 s{T+5}, s{S_WK}, {QAREA}",
            f"v_and_b32 v{V_T}, 1, v0", f"v_lshlrev_b32 v{V_T}, 9, v{V_T}", f"v_lshrrev_b32 v{V_FW1}, 1, v0",
            f"v_lshl_add_u32 v{V_T4}, v{V_FW1}, 4, v{V_T}", f"v_add_u32 v{V_FW1}, s{S_L0}, v{V_T4}",
            f"v_add_u32 v{V_FW}, {BUF0}, v{V_FW1}", f"v_add_u32 v{V_T3}, s{T+5}, v{V_T4}",
            zero(2), f"s_mov_b32 s{S_M48}, -1")
        self.tr_addresses(V_KB + 1)
        rec(zero(3), f"s_mov_b32 s{S_M48+1}, 0xffff",
            f"s_lshl_b32 s{T+4}, s{S_KS}, 12", f"s_add_u32 s{T+5}, s{T+4}, {BUF0}",
            f"v_add_u32 v{V_KA}, s{T+5}, v{V_L16}", f"v_add_u32 v{V_VA}, s{T+5}, v{V_KB+1}", f"v_add_u32 v{V_VA+1}, s{T+5}, v{V_KB+2}",
            f"v_add_u32 v{V_KA1}, s{T+4}, v{V_L16}", f"v_add_u32 v{V_KA1+1}, s{T+4}, v{V_KB+1}", f"v_add_u32 v{V_KA1+2}, s{T+4}, v{V_KB+2}",
            f"v_mov_b32 v{V_KB}, v{V_L16}", f"v_mov_b32 v{V_IDX}, 0xdddddddd", f"v_mov_b32 v{VS+7}, 0x3f80",
            f"v_and_b32 v{V_T}, 31, v0", f"v_mul_u32_u24 v{V_T}, 56, v{V_T}", f"v_lshrrev_b32 v{V_T2}, 5, v0",
            f"v_lshl_add_u32 v{V_OUT}, v{V_T2}, 5, v{V_T}", *[f"v_mov_b32 v{VR+8*i+7}, 0x3f80" for i in range(3)])
        rec(f"s_lshl_b32 s{T+5}, s{S_QG}, 13", f"s_add_u32 s{T+5}, s{T+5}, {QAREA}", f"s_lshl_b32 s{T+4}, s{S_KS}, 11",
            f"v_add_u32 v{V_T}, s{T+4}, v{V_L16}")
        for j in range(4):
            rec(f"v_add_u32 v{V_T2}, {2048*(1+j)}, v{V_T}", f"v_and_b32 v{V_T2}, 0x1fff, v{V_T2}", f"v_add_u32 v{V_XW+j}, s{T+5}, v{V_T2}")
        for j, d in ((1, S_N0), (2, S_N1)):
            rec(f"s_cmp_le_u32 s{S_C}, {j}", f"s_cselect_b32 s{d}, {j+1}, {j}", f"s_mul_i32 s{d}, s{d}, 14336",
                f"s_add_u32 s{d}, s{d}, s{S_WVV}")
        rec(f"s_lshl_b32 s{T+1}, s{S_HEAD}, 18", f"s_lshl_b32 s{T+2}, s{S_HEAD}, 4",
            f"s_mov_b32 s{S_W+2}, {WSK_HEAD}", f"s_mov_b32 s{S_D+2}, 16", f"s_mov_b32 s{S_O+2}, {HEAD_BYTES}",
            *[f"s_mov_b32 s{d+3}, 0x00020000" for d in (S_W, S_D, S_O)],
            f"s_cmp_lt_u32 s{S_WV}, 4", "s_cselect_b64 vcc, -1, 0")
        self.a = keep
        setup = [l.strip() for l in rec.lines]
        assert o.split >= len(setup) or not setup[o.split].startswith(("s_cselect", "v_cndmask"))
        a(*setup[:o.split])
        a("s_waitcnt lgkmcnt(0)")
        self.stamp(True)
        base = lambda d, b: [f"s_add_u32 s{d}, s{b}, s{T}", f"s_addc_u32 s{d+1}, s{b+1}, 0"]
        va = [*dv(S_GV, 0), *dv(S_GV, 1)]
        q2 = o.split + o.qgap
        assert q2 >= len(setup) or not setup[q2].startswith(("s_cselect", "v_cndmask"))
        ka = [*base(S_K, 6), ld4(VS, S_K, S_GV), ld3(VS, S_K, S_GV)]
        qq = [*base(S_Q, 4), ld4(VS + 8, S_Q, S_QOFF), ld3(VS + 8, S_Q, S_QOFF)]
        kown = [ld4(VR, S_K, S_QOFF), ld3(VR, S_K, S_QOFF)]
        tpart = ["s_waitcnt lgkmcnt(0)",
                 f"s_bitcmp1_b32 s{S_HEAD}, 0", f"s_cselect_b32 s{T+3}, 16, 0", f"s_lshr_b32 s{S_TB}, s{S_TB}, s{T+3}",
                 f"s_and_b32 s{T+3}, s{S_TB}, 0x7fff", f"s_lshl_b32 s{S_TB}, s{S_TB}, 16",
                 f"v_mov_b32 v{V_T}, {hex(LOG2E)}", f"v_mul_f32 v{V_T}, s{S_TB}, v{V_T}",
                 f"s_cmp_gt_u32 s{T+3}, {hex(T_LIMIT)}", f"v_readfirstlane_b32 s{S_SC}, v{V_T}",
                 f"v_mul_f32 v{V_T2}, -0.5, abs(v{V_T})", f"v_cvt_pk_bf16_f32 v{VS+15}, v{V_T2}, 0",
                 "s_cbranch_scc1 L_slow0"]
        a(*(qq if o.qfirst else ka), f"s_load_dword s{S_TB}, s[10:11], s{T+3}", *setup[o.split:q2], *(ka if o.qfirst else qq), *base(S_V, 8))
        self.stamp(True)
        a(*setup[q2:])
        if o.yprio:
            a(*self.prio(1))
        a(*va)
        if o.touch3:
            d = self.deferred_scalars()
            a(f"s_cmp_lg_u32 s{S_WV}, {o.touch3 - 1}", "s_cbranch_scc1 L_notouch", *d[0], *d[1], *d[2], *d[3],
              f"buffer_load_dword v{V_DUM}, off, {sr(S_W)}, s{S_GK}", f"buffer_load_dword v{V_DUM}, off, {sr(S_O)}, s{S_QOFF}",
              f"buffer_load_dword v{V_DUM}, off, {sr(S_D)}, 0", "L_notouch:")
        self.stamp(True)
        if o.qfirst:
            a(*tpart, "s_waitcnt vmcnt(2)")
            self.stamp()
            a(*kown)
            ck = norm_chunks_valu(VS, VS + 16, VS + 24)
            cq = norm_chunks_valu(VS + 8, VS + 32, VS + 40, S_SC)
            wk, wq = wfrag(V_FW, VS, 0), wfrag(V_T3, VS + 8, 0)
            for k in range(6):
                if k == 5:
                    a(wq[0], *cq[k][1], wq[1], wk[0], *ck[k][1], wk[1])
                else:
                    a(*cq[k][1], *ck[k][1])
        else:
            a("s_waitcnt vmcnt(4)")
            self.stamp()
            self.normalize(VS, VS + 16, VS + 24, write=wfrag(V_FW, VS, 0))
            self.stamp(True)
            a(*([ld4(VR + 8, S_K, S_N0), ld3(VR + 8, S_K, S_N0)] if o.kbfill else []), *kown, *tpart)
            self.stamp(True)
            a(f"s_waitcnt vmcnt({6 if o.kbfill else 4})")
            self.stamp(True)
            self.normalize(VS + 8, VS + 16, VS + 24, S_SC, write=wfrag(V_T3, VS + 8, 0))
        self.stamp(True)
        a(f"s_waitcnt vmcnt({4 if o.kbfill else 2}) lgkmcnt(0)", "s_barrier")
        self.stamp()
        rq = lambda j: [f"ds_read_b128 {Q(j,0)}, v{V_XW+j}", f"ds_read_b128 {Q(j,1)}, v{V_XW+j} offset:1024"]
        rv = [rdv(0, 0, 0), rdv(0, 0, 1), rdv(0, 1, 0), rdv(0, 1, 1)]
        pr = sum((self.prio(n, role) for role, p, n in o.p0 if p < 0), [])
        d = self.deferred_scalars()
        if o.kbfill:
            c = [x[1] for x in norm_chunks_valu(VR + 8, VRT, V_NT)]
            w = wfrag(V_FW, VR + 8, 32768)
            a(rdk(0, 0), rdk(0, 1), *rq(0), *rq(1), *rq(2), *rq(3), *rv, *pr, "s_waitcnt vmcnt(2)", *c[0], *d[0],
              "s_waitcnt lgkmcnt(10)", qk(0, 0, 0, 0), *d[1], *c[1], qk(0, 1, 0, 0), *d[2], *c[3], *c[4], w[0], *d[3],
              *c[5], w[1], *d[4], *d[5], "s_waitcnt lgkmcnt(6)")
        elif o.ownfill:
            c = [x[1] for x in norm_chunks_valu(VR, VRT, V_NT)]
            st = [f"buffer_store_dwordx4 {vr(VR+4*f,4)}, v{V_T4}, {sr(S_W)}, s{S_GK} offen offset:{1024*f} {o.stfl}" for f in range(2)]
            w = wfrag(V_FW1, VR, 32768)
            a(rdk(0, 0), rdk(0, 1), *rq(0), *rq(1), *rq(2), *rq(3), *rv, *pr, *d[0], *d[1], "s_waitcnt vmcnt(0)",
              *([ld4(VR + 8, S_K, S_N0), ld3(VR + 8, S_K, S_N0)] if o.kbearly else []), *c[0],
              "s_waitcnt lgkmcnt(10)", qk(0, 0, 0, 0), *d[2], *c[1], qk(0, 1, 0, 0), *d[3], *c[3], *c[4], st[0], w[0], *d[4],
              *c[5], st[1], w[1], *d[5], "s_waitcnt lgkmcnt(6)")
        elif o.fill:
            a(rdk(0, 0), rq(0)[0], rdk(0, 1), rq(0)[1], *rq(1), *pr, *d[0], *d[1], *d[2], *d[3],
              "s_waitcnt lgkmcnt(4)", qk(0, 0, 0, 0), *d[4], "s_waitcnt lgkmcnt(2)", qk(0, 1, 0, 0),
              *rq(2), *rq(3), *rv, *d[5], "s_waitcnt lgkmcnt(8)")
        else:
            a(rdk(0, 0), rdk(0, 1), *rq(0), *rq(1), *rq(2), *rq(3), *rv, *pr)
            a(*d[0], *d[1], "s_waitcnt lgkmcnt(10)", qk(0, 0, 0, 0), qk(0, 1, 0, 0), *d[2], *d[3], *d[4], *d[5],
              "s_waitcnt lgkmcnt(4)", "s_nop 1")

    def epilogue(self):
        a = self.a
        U = self.last_unit
        a(pv(15, 0, U, 3), f"v_readfirstlane_b32 s{S_T}, v{V_T2}", pv(15, 1, U, 3),
          f"s_cmp_lg_u32 s{S_T}, 0", "s_cbranch_scc1 L_slow")
        a(*[f"v_pk_add_f32 {vr(VO+2*i,2)}, {vr(VO+2*i,2)}, {vr(VO+16+2*i,2)}" for i in range(8)])
        if self.o.ldsout:
            a(f"v_mov_b32 v{V_VA}, v{V_XW+3}", f"v_sub_u32 v{V_KA}, v{V_XW+3}, v{V_L16}", f"v_add_u32 v{V_KA}, v{V_KA}, v{V_OUT}")
        a("s_waitcnt lgkmcnt(0)")
        a(*[f"v_pk_add_f32 {vr(VO+2*i,2)}, {vr(VO+2*i,2)}, {vr(VO+32+2*i,2)}" for i in range(8)])
        self.finalize(VO + 48, VO)

    def slow(self):
        a = self.a
        KR, TT, M, MN, AL = VS + 16, VS + 40, VS + 48, VS + 49, VS + 50
        a("L_slow0:", *self.deferred_scalars()[3])
        a("L_slow:", "s_setprio 0", "s_waitcnt vmcnt(0) lgkmcnt(0)", "s_barrier")
        a(ld4(KR, S_Q, S_QOFF), ld3(KR, S_Q, S_QOFF))
        a(f"s_lshl_b32 s{S_L0}, s{S_WV}, 12", f"v_add_u32 v{V_XW}, s{S_L0}, v{V_L16}",
          f"v_mov_b32 v{VK}, 0x3f80", f"v_mov_b32 v{VK+1}, 0", f"v_mov_b32 v{VK+2}, 0x3f80", f"v_mov_b32 v{VK+3}, 0",
          "s_mov_b64 exec, 0xffff", f"ds_write_b128 v{V_XW}, {vr(VK,4)} offset:3840", "s_mov_b64 exec, -1",
          f"v_mov_b32 v{KR+7}, 0", f"v_mov_b32 v{M}, 0xff800000", "s_nop 7")
        a(*[f"v_mov_b32 v{VO+r}, 0" for r in range(16)])
        a("s_waitcnt vmcnt(0)")
        self.normalize(KR, TT, VS + 52, S_SC)
        a(*wfrag(V_FW1, KR, 0), f"ds_read_b128 {Q(0,0)}, v{V_XW}", f"ds_read_b128 {Q(0,1)}, v{V_XW} offset:1024",
          "s_waitcnt lgkmcnt(0)")
        a(f"s_mov_b32 s{S_GV}, s{S_WVV}", f"s_mov_b32 s{S_CNT}, 16", "L_slow_group:")
        a(ld4(KR, S_K, S_GV), ld3(KR, S_K, S_GV), f"s_add_u32 m0, s{S_L0}, 2048", "s_nop 0", *dv(S_GV, 0), *dv(S_GV, 1),
          "s_waitcnt vmcnt(0)")
        self.normalize(KR, TT, VS + 52)
        a(*wfrag(V_FW1, KR, 0),
          f"v_mov_b32 v{V_KA}, v{V_L16}", f"v_mov_b32 v{V_VA}, v{V_KB+1}", f"v_mov_b32 v{V_VA+1}, v{V_KB+2}",
          f"s_mov_b32 s{S_G}, 8", "s_waitcnt lgkmcnt(0)", "s_barrier", "L_slow_tile:")
        a(rdk(0, 0), rdk(0, 1), rdv(0, 0, 0), rdv(0, 0, 1), rdv(0, 1, 0), rdv(0, 1, 1))
        a("s_waitcnt lgkmcnt(0)", qk(0, 0, 0, 0), qk(0, 1, 0, 0), "s_nop 15")
        a(f"v_max3_f32 v{MN}, v{VS}, v{VS+1}, v{M}")
        for r in range(2, 16, 2):
            a(f"v_max3_f32 v{MN}, v{VS+r}, v{VS+r+1}, v{MN}")
        a(f"v_mov_b32 v{AL}, v{MN}", "s_nop 1", f"v_permlane32_swap_b32 v{MN}, v{AL}", "s_nop 1",
          f"v_max_f32 v{MN}, v{MN}, v{AL}", f"v_sub_f32 v{AL}, v{M}, v{MN}", f"v_exp_f32 v{AL}, v{AL}", f"v_mov_b32 v{M}, v{MN}")
        for r in range(16):
            a(f"v_sub_f32 v{VS+r}, v{VS+r}, v{MN}", f"v_mul_f32 v{VO+r}, v{AL}, v{VO+r}")
        a(*[ex(0, r) for r in range(16)])
        a("s_nop 1", pv(0, 0, 0, 0), pv(0, 1, 0, 0),
          f"v_add_u32 v{V_KA}, 4096, v{V_KA}", f"v_add_u32 v{V_VA}, 4096, v{V_VA}", f"v_add_u32 v{V_VA+1}, 4096, v{V_VA+1}",
          "s_nop 15", f"s_sub_u32 s{S_G}, s{S_G}, 1", f"s_cmp_lg_u32 s{S_G}, 0", "s_cbranch_scc1 L_slow_tile")
        a("s_barrier", f"s_add_u32 s{S_GV}, s{S_GV}, 14336", f"s_sub_u32 s{S_CNT}, s{S_CNT}, 1", f"s_cmp_lg_u32 s{S_CNT}, 0",
          "s_cbranch_scc1 L_slow_group")
        if self.o.ldsout:
            a(f"v_mov_b32 v{V_VA}, v{V_XW}", f"v_add_u32 v{V_KA}, s{S_L0}, v{V_OUT}")
        self.finalize(VO)
        a("s_endpgm")

    def build(self):
        a, o = self.a, self.o
        n = "standalone__qk_norm__prompt_kernel"
        a('.amdgcn_target "amdgcn-amd-amdhsa--gfx950"', ".text", f".globl {n}", ".p2align 8", f".type {n},@function", f"{n}:")
        self.prologue()
        self.stage("first", 0)
        self.stamp()
        a(f".p2align {o.align}", "L_loop:")
        self.stage("mid", 1, poll=True)
        self.stage("mid", 0, close=True)
        a("s_cbranch_scc1 L_loop")
        self.stamp()
        self.stage("last", 1)
        self.stamp()
        self.epilogue()
        self.stamp(True)
        if o.stamps:
            a("s_waitcnt vmcnt(0)")
        self.stamp()
        self.stamp_flush()
        a("L_end:", "s_endpgm")
        self.slow()
        kd = f""".section .rodata,"a"
.p2align 6
.amdhsa_kernel {n}
  .amdhsa_next_free_vgpr {NV}
  .amdhsa_next_free_sgpr {102 if o.stamps else 72}
  .amdhsa_accum_offset {(NV + 3) // 4 * 4}
  .amdhsa_group_segment_fixed_size 0
  .amdhsa_kernarg_size 56
  .amdhsa_user_sgpr_count 2
  .amdhsa_user_sgpr_kernarg_segment_ptr 1
  .amdhsa_system_sgpr_workgroup_id_x 1
.end_amdhsa_kernel
"""
        return HEADER + a.text() + kd


def parser():
    tup = lambda s: tuple(map(int, s.split(","))) if s != "none" else None
    ap = argparse.ArgumentParser()
    ap.add_argument("out")
    ap.add_argument("--stamps", action="store_true")
    ap.add_argument("--fine", type=int, default=0)
    ap.add_argument("--poll_p", type=int, default=4)
    ap.add_argument("--vm_pos", type=tup, default=(31, 41, 51))
    sched = lambda x: [(e.split(":")[0], int(e.split(":")[1]), int(e.split(":")[2])) for e in x.split(",") if e]
    ap.add_argument("--kbin", type=int, default=1)
    ap.add_argument("--pubbar", type=int, default=1)
    ap.add_argument("--directst", type=int, default=1)
    ap.add_argument("--st_s", type=int, default=2)
    ap.add_argument("--align", type=int, default=6)
    ap.add_argument("--stfl", type=lambda x: x.replace("_", " "), default="sc1")
    ap.add_argument("--b_p", type=int, default=2)
    ap.add_argument("--kb_pos", type=tup, default=(0, 1))
    ap.add_argument("--vpos", type=int, default=1)
    ap.add_argument("--yprio", type=int, default=1)
    ap.add_argument("--qgap", type=int, default=16)
    ap.add_argument("--ks", type=int, default=3)
    ap.add_argument("--vs", type=tup, default=(2, 3))
    ap.add_argument("--ds", type=tup, default=(1, 2))
    ap.add_argument("--bs", type=int, default=2)
    ap.add_argument("--fill", type=int, default=0)
    ap.add_argument("--mu", type=int, default=0)
    ap.add_argument("--pftop", type=int, default=0)
    ap.add_argument("--touch3", type=int, default=0)
    ap.add_argument("--cprobe", type=tup, default=None)
    ap.add_argument("--codepf", type=int, default=7)
    ap.add_argument("--vfl", default="")
    ap.add_argument("--pubzero", type=int, default=0)
    ap.add_argument("--kbfill", type=int, default=0)
    ap.add_argument("--ownfill", type=int, default=0)
    ap.add_argument("--kbearly", type=int, default=0)
    ap.add_argument("--qfirst", type=int, default=0)
    ap.add_argument("--earlyw", type=int, default=1)
    ap.add_argument("--pollat", type=int, default=0)
    ap.add_argument("--skipflag", type=int, default=1)
    ap.add_argument("--touch", type=int, default=0)
    ap.add_argument("--touch2", type=int, default=0)
    ap.add_argument("--latev", type=int, default=0)
    ap.add_argument("--p1", type=sched, default=[])
    ap.add_argument("--ackdiag", action="store_true")
    ap.add_argument("--polldiag", action="store_true")
    ap.add_argument("--probe", type=tup, default=None)
    ap.add_argument("--forceabort", action="store_true")
    ap.add_argument("--ks0", type=int, default=2)
    ap.add_argument("--kownpos", type=int, default=2)
    ap.add_argument("--p0", type=sched, default=sched("b:-1:1,o:2:0,y:4:0,y:6:1,y:7:0,y:8:1,y:11:0,y:13:1"))
    ap.add_argument("--pm", type=sched, default=sched("y:10:0,y:13:1"))
    ap.add_argument("--p7", type=sched, default=sched("y:11:0"))
    ap.add_argument("--own_p", type=int, default=0)
    ap.add_argument("--c_p", type=int, default=8)
    ap.add_argument("--pub_p", type=int, default=8)
    ap.add_argument("--xbar", type=tup, default=(14, 2))
    ap.add_argument("--outfl", default="sc1")
    ap.add_argument("--tail", type=int, default=2)
    ap.add_argument("--ldsout", type=int, default=1)
    ap.add_argument("--split", type=int, default=10)
    ap.add_argument("--s0", type=lambda x: (x.split(":")[0], tup(x.split(":")[1])), default=None)
    return ap


def generate(argv):
    o = parser().parse_args(argv)
    VFL[0] = o.vfl + " " if o.vfl else ""
    g = Gen(o)
    open(o.out, "w").write(g.build())
    return g.nst


if __name__ == "__main__":
    import sys
    print("stamps:", generate(sys.argv[1:]))
```

```python
import sys

HEADER = """; Kernarg layout for this problem (56 bytes, ptrs only, base s[0:1]):
; @launch grid=(256,1,1) block=(512,1,1) lds=163840
;
; 4th key block ("unit"); partial sums are exchanged through LDS during the last stage.
"""

HEAD_BYTES = 4096 * 56
WSK_HEAD = 128 * 2048
LOG2E = 0x3FB8AA3B
EPS = 0x358637BD
T_LIMIT = 0x41A6
BUF0, QAREA = 0x10000, 0x20000
ABORT_WORD = 3852
SPIN_LIMIT = 1 << 16

SPLIT, QGAP = 10, 16
OWN_P, B_P, C_P, PUB_P = 0, 2, 8, 8
POLL_P = 4
T0, XBAR = 8, (14, 2)
PRIO0 = [("o", 2, 0), ("y", 4, 0), ("y", 6, 1), ("y", 7, 0), ("y", 8, 1), ("y", 11, 0), ("y", 13, 1)]
PRIOM = [("y", 10, 0), ("y", 13, 1)]
PRIO7 = [("y", 11, 0)]

V_T, V_ROW, V_L16, V_KA, V_OUT, V_T2, V_IDX = 1, 2, 3, 4, 5, 6, 7
V_VA = 8
V_XW = 10
V_T3, V_T4 = 14, 15
VQ, VO, VS, VK, VV = 16, 48, 112, 176, 192
VR, VRT = 208, 232
V_FW, V_FW1 = 240, 241
V_KB = 242
V_NT = 246
V_KA1 = 250
V_DUM = 253
NV = 254

S_CM, S_CH = 18, 19
S_Q, S_K, S_V, S_O, S_W, S_D = 20, 24, 28, 32, 36, 40
S_HEAD, S_C, S_WV, S_KS, S_QG = 44, 45, 46, 47, 48
S_G, S_GK, S_GV, S_L0, S_N0, S_CNT, S_WK, S_WVV = 49, 50, 51, 52, 53, 54, 55, 56
S_TB, S_SC, S_ABORT, S_QOFF, S_N1 = 57, 58, 59, 60, 61
S_M48 = 62
T = 64


def vr(b, n): return f"v[{b}:{b+n-1}]"
def sr(b): return f"s[{b}:{b+3}]"
def S(t, o=0, n=16): return vr(VS + 16 * (t % 4) + o, n)
def K(u, f): return vr(VK + 8 * (u % 2) + 4 * f, 4)
def V(u, f): return vr(VV + 8 * (u % 2) + 4 * f, 4)
def Vh(u, f, h): return vr(VV + 8 * (u % 2) + 4 * f + 2 * h, 2)
def Q(b, f): return vr(VQ + 8 * b + 4 * f, 4)
def O(b): return vr(VO + 16 * b, 16)
def qk(t, f, u, b): return f"v_mfma_f32_32x32x16_bf16 {S(t)}, {K(u,f)}, {Q(b,f)}, {S(t) if f else 0}"
def pv(t, f, u, b): return f"v_smfmac_f32_32x32x32_bf16 {O(b)}, {V(u,f)}, {S(t,8*f,8)}, v{V_IDX}"
def rdk(u, f, b=0): return f"ds_read_b128 {K(u,f)}, v{V_KA1 if b else V_KA} offset:{(u%4)*16384+1024*f}"
def rdv(u, f, h, b=0): return f"ds_read_b64_tr_b16 {Vh(u,f,h)}, v{(V_KA1+1 if b else V_VA)+f} offset:{(u%4)*16384+224*h}"
def rdk_abs(u, f, n): return f"ds_read_b128 {K(u,f)}, v{V_KB} offset:{n*4096+1024*f}"
def rdv_abs(u, f, h, n): return f"ds_read_b64_tr_b16 {Vh(u,f,h)}, v{V_KB+1+f} offset:{n*4096+224*h}"
def ex(t, r): return f"v_exp_f32 v{VS+16*(t%4)+r}, v{VS+16*(t%4)+r}"
def ld4(R, srd, so): return f"buffer_load_dwordx4 {vr(R,4)}, v{V_ROW}, {sr(srd)}, s{so} offen"
def ld3(R, srd, so): return f"buffer_load_dwordx3 {vr(R+4,3)}, v{V_ROW}, {sr(srd)}, s{so} offen offset:16"
def rows(R, srd, so): return [ld4(R, srd, so), ld3(R, srd, so)]
def dk(so, j): return [f"buffer_load_dwordx4 v{V_L16}, {sr(S_W)}, s{so} offen offset:{1024*j} sc1 lds"]
def dv(so, j):
    ins = f"buffer_load_dwordx4 v{V_L16}, {sr(S_V)}, s{so} offen offset:{1024*j} lds"
    return [f"s_mov_b64 exec, s[{S_M48}:{S_M48+1}]", ins, "s_mov_b64 exec, -1"] if j else [ins]
def wfrag(addr, R, off):
    return [f"ds_write_b128 v{addr}, {vr(R,4)} offset:{off}", f"ds_write_b128 v{addr}, {vr(R+4,4)} offset:{off+1024}"]
def base(d, b, off): return [f"s_add_u32 s{d}, s{b}, s{off}", f"s_addc_u32 s{d+1}, s{b+1}, 0"]
FLAGLOAD = f"buffer_load_dwordx4 {vr(V_XW,4)}, off, {sr(S_D)}, 0 sc1"


def resolve(stream, pending):
    out, q = [], list(pending)
    for x in stream:
        if isinstance(x, tuple) and x[0] == "need":
            idx = [i for i, t in enumerate(q) if t in x[1]]
            if idx:
                q = q[max(idx) + 1:]
                assert len(q) <= 15
                out.append(f"s_waitcnt lgkmcnt({len(q)})")
            continue
        text, tag = (x[1], x[2]) if isinstance(x, tuple) else (x, None)
        if text.startswith("ds_"):
            q.append(tag)
        elif "lgkmcnt(0)" in text:
            q = []
        out.append(text)
    return out, q


def norm_chunks(R, U, N, s_scale=None):
    un = lambda i: [f"v_lshlrev_b32 v{U+2*(i%3)}, 16, v{R+i}", f"v_and_b32 v{U+2*(i%3)+1}, 0xffff0000, v{R+i}"]
    dot = lambda i: f"v_dot2_f32_bf16 v{N+i%2}, v{R+i}, v{R+i}, {f'v{N+i%2}' if i > 1 else 0}"
    one = lambda i: (un(i + 2) if i + 2 < 7 else []) + [
        f"v_pk_mul_f32 {vr(U+2*(i%3),2)}, {vr(U+2*(i%3),2)}, {vr(N,2)} op_sel_hi:[1,0]",
        f"v_cvt_pk_bf16_f32 v{R+i}, v{U+2*(i%3)}, v{U+2*(i%3)+1}"]
    scale = [f"v_mul_f32 v{N}, s{s_scale}, v{N}"] if s_scale is not None else []
    return [[dot(i) for i in range(7)],
            [f"v_add_f32 v{N}, v{N}, v{N+1}"] + un(0)
            + [f"v_add_f32_dpp v{N}, v{N}, v{N} quad_perm:[1,0,3,2] row_mask:0xf bank_mask:0xf",
               f"v_sqrt_f32 v{N}, v{N}", un(1)[0], f"v_add_f32 v{N}, {hex(EPS)}, v{N}", f"v_rcp_f32 v{N}, v{N}", un(1)[1]],
            scale + one(0) + one(1), one(2) + one(3), one(4) + one(5) + one(6)]


def normalize(R, U, N, s_scale=None, write=("", "")):
    c = norm_chunks(R, U, N, s_scale)
    return c[0] + ["s_nop 2"] + c[1] + c[2] + c[3] + [write[0]] + c[4] + [write[1]]


def tr_addresses(dst):
    t, u = V_T, V_T2
    return [f"v_lshrrev_b32 v{t}, 5, v0", f"v_mul_u32_u24 v{dst}, 448, v{t}",
            f"v_bfe_u32 v{t}, v0, 2, 2", f"v_mad_u32_u24 v{dst}, v{t}, 56, v{dst}",
            f"v_and_b32 v{t}, 1, v0", f"v_lshl_add_u32 v{dst}, v{t}, 5, v{dst}",
            f"v_bfe_u32 v{t}, v0, 4, 1", f"v_lshl_add_u32 v{dst}, v{t}, 4, v{dst}",
            f"v_bfe_u32 v{t}, v0, 1, 1", f"v_lshl_add_u32 v{dst}, v{t}, 3, v{dst}",
            f"v_and_b32 v{t}, 19, v0", f"v_cmp_eq_u32 vcc, 19, v{t}",
            f"v_add_u32 v{dst+1}, {2048+896}, v{dst}", f"v_add_u32 v{dst}, 2048, v{dst}", f"v_mov_b32 v{u}, 3840",
            f"v_cndmask_b32 v{dst}, v{dst}, v{u}, vcc", f"v_cndmask_b32 v{dst+1}, v{dst+1}, v{u}, vcc"]


def finalize(R, X=None):
    add = lambda i: f"v_pk_add_f32 {vr(R+2*i,2)}, {vr(R+2*i,2)}, {vr(X+2*i,2)}" if X is not None else "s_nop 0"
    o = [add(6), f"v_mov_b32 v{V_T3}, v{R+12}", f"v_mov_b32 v{V_T4}, v{R+12}", add(0), add(1),
         f"v_permlane32_swap_b32 v{V_T3}, v{V_T4}", add(2), f"v_rcp_f32 v{V_T4}, v{V_T4}", add(3)]
    for i in range(8):
        if X is not None and i in (4, 5, 7):
            o.append(add(i))
        o += [f"v_pk_mul_f32 {vr(R+2*i,2)}, {vr(R+2*i,2)}, {vr(V_T3,2)} op_sel:[0,1] op_sel_hi:[1,1]",
              f"v_cvt_pk_bf16_f32 v{R+i}, v{R+2*i}, v{R+2*i+1}"]
        if i in (1, 3, 5):
            o.append(f"ds_write_b64 v{V_KA}, {vr(R+i-1,2)} offset:{4*(i-1)}")
    return o + ["s_mov_b32 exec_hi, 0", f"ds_write_b64 v{V_KA}, {vr(R+6,2)} offset:24", "s_mov_b32 exec_hi, -1",
                f"ds_read_b128 {vr(R+8,4)}, v{V_VA}", f"ds_read_b128 {vr(R+12,4)}, v{V_VA} offset:1024", "s_waitcnt lgkmcnt(1)",
                f"buffer_store_dwordx4 {vr(R+8,4)}, v{V_L16}, {sr(S_O)}, s{S_QOFF} offen sc1",
                f"s_mov_b64 exec, s[{S_M48}:{S_M48+1}]", "s_waitcnt lgkmcnt(0)",
                f"buffer_store_dwordx4 {vr(R+12,4)}, v{V_L16}, {sr(S_O)}, s{S_QOFF} offen offset:1024 sc1",
                "s_mov_b64 exec, -1"]


DEFERRED = [base(S_W, 16, T + 1), [f"s_lshl_b32 s{S_GK}, s{S_C}, 14", f"s_add_u32 s{S_GK}, s{S_GK}, s{S_WK}"],
            base(S_D, 14, T + 2), base(S_O, 12, T),
            [f"s_max_u32 s{S_CM}, s{S_C}, 3", f"s_mov_b32 s{S_G}, 3"], [f"s_mov_b32 s{S_ABORT}, 0", f"s_mov_b32 s{S_CNT}, 3"]]


class Gen:
    def __init__(self):
        self.lines = []
        self.n = 0

    def a(self, *ls):
        for l in ls:
            if l:
                self.lines.append(l if l.endswith(":") or l[0] in ".;" else "    " + l)

    def label(self, name):
        self.n += 1
        return f"{name}_{self.n}"

    def prio(self, n, role):
        l = self.label("L_prio")
        return [f"s_cbranch_{'vccnz' if role == 'y' else 'vccz'} {l}", f"s_setprio {n}", f"{l}:"]

    def prologue(self):
        a = self.a
        a("s_cmp_ge_u32 s2, 256", "s_cbranch_scc1 L_end",
          "s_load_dwordx8 s[4:11], s[0:1], 0", "s_load_dwordx4 s[12:15], s[0:1], 32", "s_load_dwordx2 s[16:17], s[0:1], 48")
        a("; one load per 128-byte line of the code up to L_end brings the instructions into L2; the values are unused",
          "s_getpc_b64 s[70:71]", "L_pc:", f"v_lshlrev_b32 v{VQ}, 7, v0", f"v_mov_b32 v{VQ+1}, s71",
          f"v_add_co_u32 v{VQ}, vcc, s70, v{VQ}", "s_nop 1", f"v_addc_co_u32 v{VQ+1}, vcc, 0, v{VQ+1}, vcc",
          "v_cmp_ge_u32 vcc, (L_end - L_pc) >> 7, v0", "s_and_saveexec_b64 s[70:71], vcc", "s_cbranch_execz L_nopf",
          f"global_load_dword v{V_DUM}, {vr(VQ,2)}, off", "L_nopf:", "s_mov_b64 exec, -1")
        a("; head = 2 * (wg & 7) + (wg >> 7), chunk c = (wg >> 3) & 15, common chunks j + (j >= c) for j = 0, 1, 2",
          f"v_lshrrev_b32 v{V_T}, 6, v0", "v_and_b32 v0, 63, v0", f"v_readfirstlane_b32 s{S_WV}, v{V_T}",
          f"s_and_b32 s{S_HEAD}, s2, 7", f"s_lshl_b32 s{S_HEAD}, s{S_HEAD}, 1", f"s_lshr_b32 s{T}, s2, 7",
          f"s_add_u32 s{S_HEAD}, s{S_HEAD}, s{T}", f"s_bfe_u32 s{S_C}, s2, 0x40003",
          f"v_mul_u32_u24 v{V_ROW}, 28, v0", f"v_lshlrev_b32 v{V_L16}, 4, v0",
          f"s_mul_i32 s{T}, s{S_HEAD}, {HEAD_BYTES}", f"s_mul_i32 s{S_WVV}, s{S_WV}, 1792",
          f"s_mul_i32 s{S_QOFF}, s{S_C}, 14336", f"s_add_u32 s{S_QOFF}, s{S_QOFF}, s{S_WVV}",
          f"s_cmp_eq_u32 s{S_C}, 0", f"s_cselect_b32 s{S_GV}, 14336, 0", f"s_add_u32 s{S_GV}, s{S_GV}, s{S_WVV}",
          f"s_and_b32 s{T+3}, s{S_HEAD}, 14", f"s_lshl_b32 s{T+3}, s{T+3}, 1")
        for d in (S_K, S_Q, S_V):
            a(f"s_mov_b32 s{d+2}, {HEAD_BYTES}", f"s_mov_b32 s{d+3}, 0x00020000")
        a(f"s_lshl_b32 s{S_L0}, s{S_WV}, 12", f"s_lshl_b32 s{S_WK}, s{S_WV}, 11",
          f"s_and_b32 s{S_KS}, s{S_WV}, 3", f"s_lshr_b32 s{S_QG}, s{S_WV}, 2")
        zero = lambda b: f"v_mfma_f32_32x32x16_bf16 {O(b)}, {vr(VV,4)}, {vr(VV,4)}, 0"
        setup = [f"v_mov_b32 v{VV+i}, 0" for i in range(4)] + [
            f"v_mov_b32 v{VK}, 0x3f80", f"v_mov_b32 v{VK+1}, 0", f"v_mov_b32 v{VK+2}, 0x3f80", f"v_mov_b32 v{VK+3}, 0",
            zero(0), f"s_add_u32 m0, s{S_L0}, {BUF0 + 2048}",
            f"v_lshlrev_b32 v{V_T}, 11, v0", f"v_and_b32 v{V_T}, 0x18000, v{V_T}",
            f"v_and_b32 v{V_T2}, 0xf0, v{V_L16}", f"v_add3_u32 v{V_T}, v{V_T}, v{V_T2}, s{S_L0}",
            f"ds_write_b128 v{V_T}, {vr(VK,4)} offset:3840",
            zero(1), f"s_add_u32 s{T+5}, s{S_WK}, {QAREA}",
            f"v_and_b32 v{V_T}, 1, v0", f"v_lshlrev_b32 v{V_T}, 9, v{V_T}", f"v_lshrrev_b32 v{V_FW1}, 1, v0",
            f"v_lshl_add_u32 v{V_T4}, v{V_FW1}, 4, v{V_T}", f"v_add_u32 v{V_FW1}, s{S_L0}, v{V_T4}",
            f"v_add_u32 v{V_FW}, {BUF0}, v{V_FW1}", f"v_add_u32 v{V_T3}, s{T+5}, v{V_T4}",
            zero(2), f"s_mov_b32 s{S_M48}, -1"] + tr_addresses(V_KB + 1) + [
            zero(3), f"s_mov_b32 s{S_M48+1}, 0xffff",
            f"s_lshl_b32 s{T+4}, s{S_KS}, 12", f"s_add_u32 s{T+5}, s{T+4}, {BUF0}",
            f"v_add_u32 v{V_KA}, s{T+5}, v{V_L16}", f"v_add_u32 v{V_VA}, s{T+5}, v{V_KB+1}", f"v_add_u32 v{V_VA+1}, s{T+5}, v{V_KB+2}",
            f"v_add_u32 v{V_KA1}, s{T+4}, v{V_L16}", f"v_add_u32 v{V_KA1+1}, s{T+4}, v{V_KB+1}", f"v_add_u32 v{V_KA1+2}, s{T+4}, v{V_KB+2}",
            f"v_mov_b32 v{V_KB}, v{V_L16}", f"v_mov_b32 v{V_IDX}, 0xdddddddd", f"v_mov_b32 v{VS+7}, 0x3f80",
            f"v_and_b32 v{V_T}, 31, v0", f"v_mul_u32_u24 v{V_T}, 56, v{V_T}", f"v_lshrrev_b32 v{V_T2}, 5, v0",
            f"v_lshl_add_u32 v{V_OUT}, v{V_T2}, 5, v{V_T}", *[f"v_mov_b32 v{VR+8*i+7}, 0x3f80" for i in range(3)],
            f"s_lshl_b32 s{T+5}, s{S_QG}, 13", f"s_add_u32 s{T+5}, s{T+5}, {QAREA}", f"s_lshl_b32 s{T+4}, s{S_KS}, 11",
            f"v_add_u32 v{V_T}, s{T+4}, v{V_L16}"]
        for j in range(4):
            setup += [f"v_add_u32 v{V_T2}, {2048*(1+j)}, v{V_T}", f"v_and_b32 v{V_T2}, 0x1fff, v{V_T2}",
                      f"v_add_u32 v{V_XW+j}, s{T+5}, v{V_T2}"]
        for j, d in ((1, S_N0), (2, S_N1)):
            setup += [f"s_cmp_le_u32 s{S_C}, {j}", f"s_cselect_b32 s{d}, {j+1}, {j}", f"s_mul_i32 s{d}, s{d}, 14336",
                      f"s_add_u32 s{d}, s{d}, s{S_WVV}"]
        setup += [f"s_lshl_b32 s{T+1}, s{S_HEAD}, 18", f"s_lshl_b32 s{T+2}, s{S_HEAD}, 4",
                  f"s_mov_b32 s{S_W+2}, {WSK_HEAD}", f"s_mov_b32 s{S_D+2}, 16", f"s_mov_b32 s{S_O+2}, {HEAD_BYTES}",
                  *[f"s_mov_b32 s{d+3}, 0x00020000" for d in (S_W, S_D, S_O)],
                  f"s_cmp_lt_u32 s{S_WV}, 4", "s_cselect_b64 vcc, -1, 0"]
        a("; lane addresses, constants and zeroed accumulators, interleaved with the first requests (K chunk a, Q, V chunk a)",
          *setup[:SPLIT], "s_waitcnt lgkmcnt(0)",
          *base(S_K, 6, T), *rows(VS, S_K, S_GV), f"s_load_dword s{S_TB}, s[10:11], s{T+3}", *setup[SPLIT:SPLIT + QGAP],
          *base(S_Q, 4, T), *rows(VS + 8, S_Q, S_QOFF), *base(S_V, 8, T), *setup[SPLIT + QGAP:],
          *self.prio(1, "y"), *dv(S_GV, 0), *dv(S_GV, 1))
        a("; K block of chunk a -> buffer 0", "s_waitcnt vmcnt(4)",
          *normalize(VS, VS + 16, VS + 24, write=wfrag(V_FW, VS, 0)), *rows(VR, S_K, S_QOFF))
        a("; scale t * log2(e), pad slot -|t| * log2(e) / 2 in both halves, range check of t", "s_waitcnt lgkmcnt(0)",
          f"s_bitcmp1_b32 s{S_HEAD}, 0", f"s_cselect_b32 s{T+3}, 16, 0", f"s_lshr_b32 s{S_TB}, s{S_TB}, s{T+3}",
          f"s_and_b32 s{T+3}, s{S_TB}, 0x7fff", f"s_lshl_b32 s{S_TB}, s{S_TB}, 16",
          f"v_mov_b32 v{V_T}, {hex(LOG2E)}", f"v_mul_f32 v{V_T}, s{S_TB}, v{V_T}",
          f"s_cmp_gt_u32 s{T+3}, {hex(T_LIMIT)}", f"v_readfirstlane_b32 s{S_SC}, v{V_T}",
          f"v_mul_f32 v{V_T2}, -0.5, abs(v{V_T})", f"v_cvt_pk_bf16_f32 v{VS+15}, v{V_T2}, 0", "s_cbranch_scc1 L_slow0")
        a("; Q block -> query area", "s_waitcnt vmcnt(4)",
          *normalize(VS + 8, VS + 16, VS + 24, S_SC, write=wfrag(V_T3, VS + 8, 0)),
          "s_waitcnt vmcnt(2) lgkmcnt(0)", "s_barrier")
        a("; pipeline fill", rdk(0, 0), rdk(0, 1))
        for j in range(4):
            a(f"ds_read_b128 {Q(j,0)}, v{V_XW+j}", f"ds_read_b128 {Q(j,1)}, v{V_XW+j} offset:1024")
        d = DEFERRED
        a(rdv(0, 0, 0), rdv(0, 0, 1), rdv(0, 1, 0), rdv(0, 1, 1), "s_setprio 1",
          *d[0], *d[1], "s_waitcnt lgkmcnt(10)", qk(0, 0, 0, 0), qk(0, 1, 0, 0), *d[2], *d[3], *d[4], *d[5],
          "s_waitcnt lgkmcnt(4)", "s_nop 1")

    def stage(self, kind, par, poll=False, close=False):
        sh = {(p, s): [] for p in range(16) for s in range(4)}
        post = {(p, s): [] for p in range(16) for s in range(4)}
        last, first, mid = kind == "last", kind == "first", kind == "mid"
        t0 = T0 if last else 99
        unit = lambda t: (t // 4, t % 4) if t < t0 else (t0 // 4 + t - t0, 3)
        mf = {}
        for p in range(16):
            for f in range(2):
                mf[(p, f)] = qk(p + 1, f, *unit(p + 1))
                mf[(p, 2 + f)] = pv(p - 1, f, *unit(p - 1))
        if first:
            mf[(0, 2)] = mf[(0, 3)] = ""
        if last:
            mf[(15, 0)], mf[(15, 1)], mf[(15, 2)], mf[(15, 3)] = mf[(15, 2)], mf[(15, 3)], "", ""
        if mid:
            sh[(12, 2)] += ["s_waitcnt vmcnt(0) lgkmcnt(0)", "s_barrier"]
            if close:
                sh[(15, 3)] += [f"s_sub_u32 s{S_CNT}, s{S_CNT}, 1", f"s_cmp_lg_u32 s{S_CNT}, 0"]
            if poll:
                sh[(POLL_P - 2, 2)] += [f"s_cmp_lg_u32 s{S_CNT}, 3", "s_cbranch_scc1 L_noflags", FLAGLOAD, "L_noflags:"]
                sh[(POLL_P, 0)] += [
                    "; first pass only: wait for all 16 flags of the head, bounded",
                    f"s_cmp_lg_u32 s{S_CNT}, 3", "s_cbranch_scc1 L_ready", f"s_mov_b32 s{T}, 0",
                    "L_poll:", "s_waitcnt vmcnt(0)",
                    f"v_and_b32 v{V_XW}, v{V_XW}, v{V_XW+1}", f"v_and_b32 v{V_XW+2}, v{V_XW+2}, v{V_XW+3}",
                    f"v_and_b32 v{V_XW}, v{V_XW}, v{V_XW+2}", f"s_add_u32 s{T}, s{T}, 1",
                    f"v_readfirstlane_b32 s{T+1}, v{V_XW}",
                    f"s_cmp_eq_u32 s{T+1}, 0xdddddddd", "s_cbranch_scc1 L_ready",
                    FLAGLOAD, f"s_cmp_lt_u32 s{T}, {SPIN_LIMIT}", "s_cbranch_scc1 L_poll",
                    "s_waitcnt vmcnt(0)", f"s_mov_b32 s{S_ABORT}, 1", "L_ready:"]
            for g in range(4):
                half, part, p = g // 2, g % 2, POLL_P + g
                sh[(p, 0)] += [f"s_add_u32 m0, s{S_L0}, {par*BUF0 + half*32768 + part*2048}"]
                if part == 0:
                    sh[(p - 2, 3)] += [f"s_cmp_ge_u32 s{S_G}, s{S_CM}", f"s_addc_u32 s{S_CH}, s{S_G}, 0"]
                    sh[(p - 1, 0)] += [f"s_add_u32 s{S_G}, s{S_G}, 1"]
                    sh[(p - 1, 3)] += [f"s_lshl_b32 s{S_GK}, s{S_CH}, 14", f"s_add_u32 s{S_GK}, s{S_GK}, s{S_WK}"]
                else:
                    sh[(p - 1, 3)] += [f"s_mul_i32 s{S_GV}, s{S_CH}, 14336", f"s_add_u32 s{S_GV}, s{S_GV}, s{S_WVV}"]
                for j in range(2):
                    sh[(p, 1 + j)] += dv(S_GV, j) if part else dk(S_GK, j)
        if first:
            sh[(12, 2)] += ["; wave 0 does not wait for its flag store, the youngest request in its queue",
                            "s_waitcnt vmcnt(1) lgkmcnt(0)", f"s_cmp_eq_u32 s{S_WV}, 0", "s_cbranch_scc1 L_wave0",
                            "s_waitcnt vmcnt(0)", "L_wave0:", "s_barrier"]
        for role, p, n in (PRIO0 if first else PRIO7 if last else PRIOM):
            sh[(p, 1)] += self.prio(n, role)

        for p in range(16):
            u, jj = p // 4 + 1, p % 4
            if jj == 1 and 4 * (u - 1) < t0:
                sh[(p, 1)].append(("need", [f"V{u-1}"]))
            late = first and u == 2
            if 4 * u >= t0 or (late and jj < 2):
                continue
            if jj == 2 and not late:
                sh[(p, 2)].append(("need", [f"K{u}"]))
            b = par ^ (u == 4)
            if jj < 2:
                sh[(p, 2 if first and p != 12 else 3)].append(("ds", rdk(u, jj, b), f"K{u}"))
            else:
                sh[(p, 2)].append(("ds", rdv(u, jj - 2, 0, b), f"V{u}"))
                sh[(p, 3)].append(("ds", rdv(u, jj - 2, 1, b), f"V{u}"))

        if first:
            m0 = lambda off: [f"s_add_u32 m0, s{S_L0}, {off}", "s_nop 0"]
            st = lambda f: [f"buffer_store_dwordx4 {vr(VR+4*f,4)}, v{V_T4}, {sr(S_W)}, s{S_GK} offen{' offset:1024' * f} sc1"]
            ev = sorted([((OWN_P + 1, 1), st(0), "x"), ((OWN_P + 1, 3), st(1), "st"),
                         ((0, 1), [ld4(VR + 8, S_K, S_N0)], "x"), ((0, 2), [ld3(VR + 8, S_K, S_N0)], "Kb"),
                         ((1, 0), m0(BUF0 + 32768 + 2048) + dv(S_N0, 0), "x"), ((1, 2), dv(S_N0, 1), "Vb"),
                         ((3, 1), [ld4(VR + 16, S_K, S_N1)], "x"), ((3, 2), [ld3(VR + 16, S_K, S_N1)], "Kc"),
                         ((4, 1), m0(2048) + dv(S_N1, 0), "x"), ((4, 2), dv(S_N1, 1), "x"),
                         ((5, 1), m0(32768 + 2048) + dv(S_QOFF, 0), "x"), ((5, 2), dv(S_QOFF, 1), "x")], key=lambda e: e[0])
            order = ["Kown"] + [e[2] for e in ev]

            def cnt(tag, pos, incl):
                n = 1 + sum(1 for e in ev if e[0] < pos or (incl and e[0] == pos))
                assert order.index(tag) < n
                return n - order.index(tag) - 1
            for R, p0, addr, off, tag in ((VR, OWN_P, V_FW1, 32768, "Kown"), (VR + 8, B_P, V_FW, 32768, "Kb"),
                                          (VR + 16, C_P, V_FW1, 0, "Kc")):
                post[(p0, 0)].append(f"s_waitcnt vmcnt({cnt(tag, (p0, 0), True)})")
                for pos, c in zip(((p0, 0), (p0, 1), (p0, 3), (p0 + 1, 0), (p0 + 1, 2)), norm_chunks(R, VRT, V_NT)):
                    post[pos] += c
                sh[(p0 + 1, 3)] += wfrag(addr, R, off)
            for pos, ins, _ in ev:
                sh[pos] += ins
            sh[(6, 0)] = ["; chunk b is complete in LDS", f"s_waitcnt vmcnt({cnt('Vb', (6, 0), False)}) lgkmcnt(0)", "s_barrier",
                          ("ds", rdk(2, 0), "K2"), ("ds", rdk(2, 1), "K2")] + sh[(6, 0)]
            sh[(6, 3)] = [("need", ["K2"])] + sh[(6, 3)]
            assert all(e[0] < (PUB_P, 0) for e in ev)
            sh[(PUB_P, 0)] = ["; publish: every wave's stores are acknowledged, then one lane sets the flag",
                              f"s_waitcnt vmcnt({cnt('st', (PUB_P, 0), False)})", "s_barrier",
                              f"s_cmp_lg_u32 s{S_WV}, 0", "s_cbranch_scc1 L_published", "s_mov_b64 exec, 1",
                              f"buffer_store_byte v{V_IDX}, v0, {sr(S_D)}, s{S_C} offen sc1", "s_mov_b64 exec, -1",
                              "L_published:"] + sh[(PUB_P, 0)]
        if last:
            sh[(0, 0)] += [f"s_lshl_b32 s{T+4}, s{S_QG}, 2"]
            for j in range(4):
                sh[(j, 1)] += [f"s_add_u32 s{T}, s{S_KS}, {1+j}"]
                sh[(j, 2)] += [f"s_and_b32 s{T}, s{T}, 3", f"s_add_u32 s{T}, s{T}, s{T+4}"]
                sh[(j, 3)] = [f"s_mul_i32 s{T}, s{T}, 12288", f"s_add_u32 s{T}, s{T}, {BUF0 + 4096 * (j % 3)}"] + sh[(j, 3)]
                post[(j, 3)] += [f"v_add_u32 v{V_XW+j}, s{T}, v{V_L16}"]
            for t in range(t0, 16):
                U = unit(t)[0]
                for f in range(2):
                    sh[(t - 2, f)].append(("ds", rdk_abs(U, f, t), f"K{U}"))
                    sh[(t, f) if t > t0 else (t - 1, f)] += [("ds", rdv_abs(U, f, h, t), f"V{U}") for h in range(2)]
                sh[(t - 2, 3)].insert(0, ("need", [f"K{U}"]))
                if t < 14:
                    sh[(t + 1, 1)].insert(0, ("need", [f"V{U}"]))
            for k in range(12):
                j, g = k // 4, k % 4
                pos = (t0 - 2 + k // 2, 2 + k % 2)
                assert (t0 - 2 + j, 2) <= pos < XBAR
                sh[pos].append(f"ds_write_b128 v{V_XW+j}, {vr(VO+16*j+4*g,4)} offset:{1024*g}")
            xr = lambda j: [("ds", f"ds_read_b128 {vr(VO+16*j+4*g,4)}, v{V_XW+3} offset:{4096*j+1024*g}", f"X{j}") for g in range(4)]
            post[(4, 3)] += [f"v_mov_b32 v{V_T}, {ABORT_WORD}"]
            sh[XBAR] += ["; exchange barrier; a wave whose poll gave up marks an otherwise unused zero word",
                         f"s_cmp_eq_u32 s{S_ABORT}, 0", "s_cbranch_scc1 L_noabort", f"ds_write_b32 v{V_T}, v{V_IDX}",
                         "L_noabort:", "s_waitcnt lgkmcnt(0)", "s_barrier",
                         ("ds", f"ds_read_b32 v{V_T2}, v{V_T}", "AB")] + xr(0) + xr(1)
            post[(14, 3)].append(("need", [f"V{unit(14)[0]}"]))
            post[(15, 1)] += [("need", ["X0"])] + xr(2)
            post[(15, 3)].append(("need", [f"V{unit(15)[0]}", "AB", "X1"]))

        stream = []
        for p in range(16):
            stream.append(f"; {kind} stage, period {p}")
            for s in range(4):
                stream += [mf[(p, s)]] + sh[(p, s)] + [ex(p, 4 * s + r) for r in range(4)] + post[(p, s)]
        out, q = resolve(stream, ["V0"] * 4)
        assert last or (q == ["V4"] * len(q) and len(q) <= 4), q
        self.a(*out)
        return unit(15)[0]

    def epilogue(self, U):
        acc = lambda j: [f"v_pk_add_f32 {vr(VO+2*i,2)}, {vr(VO+2*i,2)}, {vr(VO+16*j+2*i,2)}" for i in range(8)]
        self.a("; last PV, sum of the three received partial blocks, normalisation, store",
               pv(15, 0, U, 3), f"v_readfirstlane_b32 s{T}, v{V_T2}", pv(15, 1, U, 3),
               f"s_cmp_lg_u32 s{T}, 0", "s_cbranch_scc1 L_slow", *acc(1),
               f"v_mov_b32 v{V_VA}, v{V_XW+3}", f"v_sub_u32 v{V_KA}, v{V_XW+3}, v{V_L16}", f"v_add_u32 v{V_KA}, v{V_KA}, v{V_OUT}",
               "s_waitcnt lgkmcnt(0)", *acc(2), *finalize(VO + 48, VO))

    def slow(self):
        a = self.a
        KR, TT, TN, M, MN, AL = VS + 16, VS + 40, VS + 52, VS + 48, VS + 49, VS + 50
        a("; self-contained path: wave w = query block w against all keys, online softmax with the true running maximum",
          "L_slow0:", *DEFERRED[3], "L_slow:", "s_setprio 0", "s_waitcnt vmcnt(0) lgkmcnt(0)", "s_barrier",
          *rows(KR, S_Q, S_QOFF),
          f"s_lshl_b32 s{S_L0}, s{S_WV}, 12", f"v_add_u32 v{V_XW}, s{S_L0}, v{V_L16}",
          f"v_mov_b32 v{VK}, 0x3f80", f"v_mov_b32 v{VK+1}, 0", f"v_mov_b32 v{VK+2}, 0x3f80", f"v_mov_b32 v{VK+3}, 0",
          "s_mov_b64 exec, 0xffff", f"ds_write_b128 v{V_XW}, {vr(VK,4)} offset:3840", "s_mov_b64 exec, -1",
          f"v_mov_b32 v{KR+7}, 0", f"v_mov_b32 v{M}, 0xff800000", "s_nop 7",
          *[f"v_mov_b32 v{VO+r}, 0" for r in range(16)], "s_waitcnt vmcnt(0)",
          *normalize(KR, TT, TN, S_SC), *wfrag(V_FW1, KR, 0),
          f"ds_read_b128 {Q(0,0)}, v{V_XW}", f"ds_read_b128 {Q(0,1)}, v{V_XW} offset:1024", "s_waitcnt lgkmcnt(0)",
          f"s_mov_b32 s{S_GV}, s{S_WVV}", f"s_mov_b32 s{S_CNT}, 16")
        a("L_slow_group:", *rows(KR, S_K, S_GV), f"s_add_u32 m0, s{S_L0}, 2048", "s_nop 0", *dv(S_GV, 0), *dv(S_GV, 1),
          "s_waitcnt vmcnt(0)", *normalize(KR, TT, TN), *wfrag(V_FW1, KR, 0),
          f"v_mov_b32 v{V_KA}, v{V_L16}", f"v_mov_b32 v{V_VA}, v{V_KB+1}", f"v_mov_b32 v{V_VA+1}, v{V_KB+2}",
          f"s_mov_b32 s{S_G}, 8", "s_waitcnt lgkmcnt(0)", "s_barrier")
        a("L_slow_tile:", rdk(0, 0), rdk(0, 1), rdv(0, 0, 0), rdv(0, 0, 1), rdv(0, 1, 0), rdv(0, 1, 1),
          "s_waitcnt lgkmcnt(0)", qk(0, 0, 0, 0), qk(0, 1, 0, 0), "s_nop 15",
          *[f"v_max3_f32 v{MN}, v{VS+r}, v{VS+r+1}, v{MN if r else M}" for r in range(0, 16, 2)],
          f"v_mov_b32 v{AL}, v{MN}", "s_nop 1", f"v_permlane32_swap_b32 v{MN}, v{AL}", "s_nop 1",
          f"v_max_f32 v{MN}, v{MN}, v{AL}", f"v_sub_f32 v{AL}, v{M}, v{MN}", f"v_exp_f32 v{AL}, v{AL}", f"v_mov_b32 v{M}, v{MN}")
        for r in range(16):
            a(f"v_sub_f32 v{VS+r}, v{VS+r}, v{MN}", f"v_mul_f32 v{VO+r}, v{AL}, v{VO+r}")
        a(*[ex(0, r) for r in range(16)], "s_nop 1", pv(0, 0, 0, 0), pv(0, 1, 0, 0),
          f"v_add_u32 v{V_KA}, 4096, v{V_KA}", f"v_add_u32 v{V_VA}, 4096, v{V_VA}", f"v_add_u32 v{V_VA+1}, 4096, v{V_VA+1}",
          "s_nop 15", f"s_sub_u32 s{S_G}, s{S_G}, 1", f"s_cmp_lg_u32 s{S_G}, 0", "s_cbranch_scc1 L_slow_tile",
          "s_barrier", f"s_add_u32 s{S_GV}, s{S_GV}, 14336", f"s_sub_u32 s{S_CNT}, s{S_CNT}, 1", f"s_cmp_lg_u32 s{S_CNT}, 0",
          "s_cbranch_scc1 L_slow_group",
          f"v_mov_b32 v{V_VA}, v{V_XW}", f"v_add_u32 v{V_KA}, s{S_L0}, v{V_OUT}", *finalize(VO), "s_endpgm")

    def build(self):
        n = "standalone__qk_norm__prompt_kernel"
        self.a('.amdgcn_target "amdgcn-amd-amdhsa--gfx950"', ".text", f".globl {n}", ".p2align 8", f".type {n},@function", f"{n}:")
        self.prologue()
        self.stage("first", 0)
        self.a(".p2align 6", "L_loop:")
        self.stage("mid", 1, poll=True)
        self.stage("mid", 0, close=True)
        self.a("s_cbranch_scc1 L_loop")
        self.epilogue(self.stage("last", 1))
        self.a("L_end:", "s_endpgm")
        self.slow()
        return HEADER + "\n".join(self.lines) + f"""
.section .rodata,"a"
.p2align 6
.amdhsa_kernel {n}
  .amdhsa_next_free_vgpr {NV}
  .amdhsa_next_free_sgpr 72
  .amdhsa_accum_offset {(NV + 3) // 4 * 4}
  .amdhsa_group_segment_fixed_size 0
  .amdhsa_kernarg_size 56
  .amdhsa_user_sgpr_count 2
  .amdhsa_user_sgpr_kernarg_segment_ptr 1
  .amdhsa_system_sgpr_workgroup_id_x 1
.end_amdhsa_kernel
"""


if __name__ == "__main__":
    open(sys.argv[1], "w").write(Gen().build())
```
